```python
import torch

def _softmax(x, axis=-1):
    return torch.softmax(x, dim=axis)
def _gelu(x):
    return torch.nn.functional.gelu(x, approximate="tanh")
def _silu(x):
    return torch.nn.functional.silu(x)
def _sigmoid(x):
    return torch.sigmoid(x)
def _layernorm(x, axis=-1, eps=1e-5):
    m = x.mean(dim=axis, keepdim=True)
    v = x.var(dim=axis, keepdim=True, unbiased=False)
    return (x - m) / torch.sqrt(v + eps)
def _scatter_add(tgt, idx, src, axis=0):
    return tgt.clone().index_add_(axis, idx, src)
def _segment_sum(src, seg, n):
    out = torch.zeros((n,) + src.shape[1:], dtype=src.dtype)
    return out.index_add_(0, seg, src)
def _pad(x, pw):
    flat = tuple(v for pair in reversed(pw) for v in pair)
    return torch.nn.functional.pad(x, flat)

kernel_name = 'standalone__moe_arch_mod__prompt'

def setup_inputs():

    _w = (lambda a: (lambda t: t.to(torch.bfloat16) if t.is_floating_point() else t)(torch.as_tensor(a)))
    B, S, D, F, C = 1, 2048, 576, 4608, 8
    return {
        "x": _w((lambda *s: torch.randn(*s, dtype=torch.bfloat16) * 0.1)(B, S, D)),
        "w_r": _w((lambda *s: torch.randn(*s, dtype=torch.bfloat16) * 0.1)(D)),
        "w_gate": _w((lambda *s: torch.randn(*s, dtype=torch.bfloat16) * 0.1)(D, F)),
        "w_up": _w((lambda *s: torch.randn(*s, dtype=torch.bfloat16) * 0.1)(D, F)),
        "w_down": _w((lambda *s: torch.randn(*s, dtype=torch.bfloat16) * 0.1)(F, D)),
    }

def reference(x, w_r, w_gate, w_up, w_down):
    B, S, D = x.shape
    C = 8
    r = x @ w_r
    idx = torch.argsort(-r, axis=-1)[:, :C]
    idx_e = (lambda x, n, axis: torch.repeat_interleave(x, n, dim=axis))(idx.reshape(B, C, 1), D, axis=2)
    x_sel = (lambda x, i, axis: torch.take_along_dim(x, i, dim=axis))(x, idx_e, axis=1)
    g = _silu(x_sel @ w_gate)
    u = x_sel @ w_up
    y = (g * u) @ w_down
    r_sel = _sigmoid((lambda x, i, axis: torch.take_along_dim(x, i, dim=axis))(r, idx, axis=1))
    y = y * r_sel.reshape(B, C, 1)
    b_off = (torch.arange(B) * S).reshape(B, 1)
    flat_idx = (idx + b_off).reshape(B * C)
    zero = (x * 0.0).reshape(B * S, D)
    upd = _scatter_add(zero, flat_idx, y.reshape(B * C, D), axis=0)
    return x + upd.reshape(B, S, D)
```

```python
class Asm:
    def __init__(self):
        self.lines = []
    def __call__(self, s=""):
        for l in s.split("\n"):
            l = l.strip()
            if l:
                self.lines.append(("" if l.endswith(":") or l.startswith(".") or l.startswith(";") else "    ") + l)
    def nop(self, n):
        while n > 0:
            k = min(n, 16)
            self(f"s_nop {k-1}")
            n -= k
    def srd(self, d, b, nbytes):
        self(f"s_mov_b32 s{d}, s{b}")
        self(f"s_and_b32 s{d+1}, s{b+1}, 0xffff")
        self(f"s_mov_b32 s{d+2}, {nbytes}")
        self(f"s_mov_b32 s{d+3}, 0x20000")
    def text(self):
        return "\n".join(self.lines) + "\n"

def kernel_desc(name, vgpr, sgpr=96, accum=None):
    if accum is None:
        accum = (vgpr + 3) // 4 * 4
    return f""".amdhsa_kernel {name}
  .amdhsa_next_free_vgpr {vgpr}
  .amdhsa_next_free_sgpr {sgpr}
  .amdhsa_accum_offset {accum}
  .amdhsa_group_segment_fixed_size 0
  .amdhsa_kernarg_size 64
  .amdhsa_user_sgpr_count 2
  .amdhsa_user_sgpr_kernarg_segment_ptr 1
  .amdhsa_system_sgpr_workgroup_id_x 1
  .amdhsa_float_denorm_mode_32 3
.end_amdhsa_kernel
"""

HEADER = """; Kernarg layout for this problem (64 bytes, ptrs only, base s[0:1]):
"""
```

```python
import sys
from asmlib import *

XB = 2048*1152
WB = 576*4608*2
WS_USED = 0x400000
KEYS = 0x1000
SEL = 0x800
PART = 0x10000

a = Asm()
LDS2 = 120832
a.lines.append(HEADER +
  "; @launch kernel=k1_kernel grid=(256,1,1) block=(64,1,1) lds=0\n"
  f"; @launch kernel=k2_kernel grid=(144,1,1) block=(256,1,1) lds={LDS2}\n"
  "; @launch kernel=k3_kernel grid=(144,1,1) block=(256,1,1) lds=1024\n"
  '.amdgcn_target "amdgcn-amd-amdhsa--gfx950"\n.text')

def start(name):
    a(f".globl {name}\n.p2align 8\n.type {name},@function\n{name}:")

start("k1_kernel")
a("""
s_cmp_ge_u32 s2, 256
s_cbranch_scc1 K1_END
s_load_dwordx4 s[4:7], s[0:1], 0
s_load_dwordx2 s[8:9], s[0:1], 40
s_load_dwordx2 s[10:11], s[0:1], 56
v_lshrrev_b32 v1, 3, v0
v_and_b32 v2, 7, v0
v_lshlrev_b32 v2, 4, v2
v_mul_u32_u24 v3, 1152, v1
v_add_u32 v3, v3, v2
s_mul_i32 s3, s2, 9216
s_waitcnt lgkmcnt(0)
""")
a.srd(12, 4, XB); a.srd(16, 6, 1152); a.srd(20, 8, XB); a.srd(24, 10, WS_USED)
for i in range(9):
    a(f"buffer_load_dwordx4 v[{8+4*i}:{11+4*i}], v3, s[12:15], s3 offen offset:{128*i}")
for i in range(9):
    a(f"buffer_load_dwordx4 v[{44+4*i}:{47+4*i}], v2, s[16:19], 0 offen offset:{128*i}")
for k in range(4):
    a(f"v_mov_b32 v{4+k}, 0")
for i in range(9):
    a(f"s_waitcnt vmcnt({8-i})")
    for k in range(4):
        a(f"v_dot2c_f32_bf16 v{4+k}, v{8+4*i+k}, v{44+4*i+k}")
a.nop(3)
a("""
v_add_f32 v4, v4, v5
v_add_f32 v6, v6, v7
v_add_f32 v4, v4, v6
s_nop 1
v_add_f32_dpp v4, v4, v4 quad_perm:[1,0,3,2] row_mask:0xf bank_mask:0xf
s_nop 1
v_add_f32_dpp v4, v4, v4 quad_perm:[2,3,0,1] row_mask:0xf bank_mask:0xf
s_nop 1
v_add_f32_dpp v4, v4, v4 row_half_mirror row_mask:0xf bank_mask:0xf
v_cvt_pk_bf16_f32 v5, v4, v4
v_and_b32 v5, 0xffff0000, v5
v_ashrrev_i32 v6, 31, v5
v_or_b32 v6, 0x80000000, v6
v_xor_b32 v6, v6, v5
v_and_b32 v6, 0xffff0000, v6
v_cmp_o_f32 vcc, v5, v5
s_lshl_b32 s28, s2, 3
v_add_u32 v7, s28, v1
v_cndmask_b32 v6, 0, v6, vcc
v_sub_u32 v80, 2047, v7
v_or_b32 v6, v6, v80
v_lshlrev_b32 v7, 2, v7
v_cmp_eq_u32 vcc, 0, v2
s_and_saveexec_b64 s[30:31], vcc
""")
a(f"s_mov_b32 s29, {KEYS}")
a("""
buffer_store_dword v6, v7, s[24:27], s29 offen
s_mov_b64 exec, s[30:31]
v_mov_b32 v80, 0x207
v_cmp_class_f32 vcc, v4, v80
s_cbranch_vccz K1_COPY
s_mov_b32 s28, 0x7f807f80
s_mov_b32 s29, 0x00400040
""")
for i in range(36):
    r = 8+i
    a(f"v_and_b32 v80, s28, v{r}\nv_add_u32 v80, 0x00800080, v80\nv_lshrrev_b32 v80, 9, v80\nv_and_or_b32 v{r}, v80, s29, v{r}")
a("K1_COPY:")
for i in range(9):
    a(f"buffer_store_dwordx4 v[{8+4*i}:{11+4*i}], v3, s[20:23], s3 offen offset:{128*i}")
a("K1_END:\ns_endpgm")

GU, DN, XS, HH = 0, 73728, 110592, 119808
start("k2_kernel")
a("""
s_cmp_ge_u32 s2, 144
s_cbranch_scc1 K2_END
s_load_dwordx2 s[4:5], s[0:1], 0
s_load_dwordx4 s[8:11], s[0:1], 16
s_load_dwordx2 s[6:7], s[0:1], 32
s_load_dwordx2 s[12:13], s[0:1], 56
v_lshrrev_b32 v1, 6, v0
v_and_b32 v0, 63, v0
v_readfirstlane_b32 s3, v1
s_and_b32 s14, s2, 7
s_mul_i32 s14, s14, 18
s_lshr_b32 s15, s2, 3
s_add_u32 s14, s14, s15
s_waitcnt lgkmcnt(0)
""")
a.srd(16, 4, XB); a.srd(20, 8, WB); a.srd(24, 10, WB); a.srd(28, 6, WB); a.srd(32, 12, WS_USED)
a(f"v_lshlrev_b32 v1, 4, v0\ns_mov_b32 s36, {KEYS}")
for i in range(4):
    a(f"buffer_load_dwordx4 v[{64+4*i}:{67+4*i}], v1, s[32:35], s36 offen offset:{1024*i}")
a(f"s_mov_b32 s36, {KEYS+4096}")
for i in range(4):
    a(f"buffer_load_dwordx4 v[{80+4*i}:{83+4*i}], v1, s[32:35], s36 offen offset:{1024*i}")
a("""
v_lshrrev_b32 v2, 2, v0
v_mul_u32_u24 v2, 9216, v2
s_lshl_b32 s15, s14, 6
v_add_u32 v2, s15, v2
v_and_b32 v3, 3, v0
v_lshrrev_b32 v4, 5, v0
v_xor_b32 v3, v3, v4
v_xor_b32 v4, 2, v3
v_lshl_add_u32 v3, v3, 4, v2
v_lshl_add_u32 v4, v4, 4, v2
s_mul_i32 s36, s3, 9*147456
s_mul_i32 s37, s3, 9*1024
""")
for n in range(9):
    a(f"s_mov_b32 m0, s37\ns_add_u32 s38, s37, 36864")
    a(f"buffer_load_dwordx4 v3, s[20:23], s36 offen lds")
    a(f"s_mov_b32 m0, s38\ns_add_u32 s37, s37, 1024")
    a(f"buffer_load_dwordx4 v4, s[24:27], s36 offen lds")
    a(f"s_add_u32 s36, s36, 147456")
a("""
v_lshrrev_b32 v5, 3, v0
v_mul_u32_u24 v6, 1152, v5
v_lshrrev_b32 v5, 1, v5
v_and_b32 v5, 3, v5
v_lshlrev_b32 v5, 1, v5
v_and_b32 v7, 7, v0
v_xor_b32 v5, v5, v7
v_lshl_add_u32 v5, v5, 4, v6
s_mul_i32 s39, s14, 32*1152
s_mul_i32 s40, s3, 9
""")
for i in range(9):
    a(f"""
s_lshr_b32 s41, s40, 2
s_and_b32 s42, s40, 3
s_mul_i32 s42, s42, 8*1152
s_lshl_b32 s41, s41, 7
s_add_u32 s41, s41, s42
s_add_u32 s41, s41, s39
s_lshl_b32 s42, s40, 10
s_add_u32 s42, s42, {DN}
s_mov_b32 m0, s42
s_add_u32 s40, s40, 1
buffer_load_dwordx4 v5, s[28:31], s41 offen lds
""")
a("s_waitcnt vmcnt(27)")
a("s_mov_b32 s44, 0")
a("v_mov_b32 v10, 0")
for k in range(8):
    for q in range(0, 32, 2):
        a(f"v_subrev_u32 v8, s44, v{64+q}\nv_subrev_u32 v9, s44, v{65+q}")
        if q == 0:
            a("v_max_u32 v7, v8, v9")
        else:
            a("v_max3_u32 v7, v7, v8, v9")
    for dpp in ["row_shr:1 row_mask:0xf", "row_shr:2 row_mask:0xf", "row_shr:4 row_mask:0xf", "row_shr:8 row_mask:0xf", "row_bcast:15 row_mask:0xa", "row_bcast:31 row_mask:0xc"]:
        a(f"s_nop 1\nv_max_u32_dpp v7, v7, v7 {dpp} bank_mask:0xf")
    a(f"s_nop 1\nv_readlane_b32 s45, v7, 63\ns_nop 3\ns_add_u32 s44, s44, s45")
    m = 0x01010101 << k
    a(f"s_mov_b32 exec_lo, {hex(m)}\ns_mov_b32 exec_hi, {hex(m)}\nv_mov_b32 v10, s44\ns_mov_b64 exec, -1")
a(f"""
s_cmp_lg_u32 s2, 0
s_cbranch_scc1 K2_NOSEL
v_and_b32 v11, 7, v0
v_lshlrev_b32 v11, 2, v11
s_mov_b32 s36, {SEL}
buffer_store_dword v10, v11, s[32:35], s36 offen
K2_NOSEL:
v_and_b32 v11, 0x7ff, v10
v_sub_u32 v11, 2047, v11
v_mul_u32_u24 v11, 1152, v11
v_lshrrev_b32 v12, 3, v0
v_lshl_add_u32 v11, v12, 4, v11
""")
a(f"""
s_lshl_b32 s36, s3, 7
s_lshl_b32 s37, s3, 10
s_add_u32 s37, s37, {XS}
s_mov_b32 m0, s37
s_add_u32 s37, s37, 4096
buffer_load_dwordx4 v11, s[16:19], s36 offen lds
s_mov_b32 m0, s37
s_add_u32 s36, s36, 512
buffer_load_dwordx4 v11, s[16:19], s36 offen lds
s_cmp_lg_u32 s3, 0
s_cbranch_scc1 K2_NOX9
s_mov_b32 m0, {XS+8192}
s_mov_b32 s36, 1024
buffer_load_dwordx4 v11, s[16:19], s36 offen lds
K2_NOX9:
""")
a(f"""
v_lshrrev_b32 v12, 4, v0        ; g
v_bfe_u32 v13, v0, 2, 2         ; r
v_bfe_u32 v14, v0, 1, 1         ; m
v_and_b32 v15, 1, v0            ; ch
v_lshlrev_b32 v16, 3, v12
v_add_u32 v16, v16, v13         ; 8g+r
v_lshlrev_b32 v16, 6, v16       ; *64
v_mul_u32_u24 v17, 36864, v14
v_add_u32 v16, v16, v17
v_and_b32 v17, 1, v12
v_lshl_add_u32 v17, v14, 1, v17 ; 2m + (g&1)
v_xor_b32 v17, s3, v17
v_lshl_add_u32 v16, v17, 4, v16
v_lshl_add_u32 v16, v15, 3, v16
v_lshl_add_u32 v17, v12, 2, v13 ; f = 4g + r
v_bfe_u32 v18, v17, 1, 2        ; sigma
v_xor_b32 v18, s3, v18
v_lshlrev_b32 v17, 7, v17
v_lshl_add_u32 v17, v18, 5, v17
v_and_b32 v18, 3, v0
v_lshl_add_u32 v17, v18, 3, v17
v_add_u32 v17, {DN}, v17
v_and_b32 v18, 7, v0            ; t&7
v_lshlrev_b32 v18, 4, v18
v_lshl_add_u32 v18, v12, 7, v18
v_add_u32 v18, {XS}, v18
s_waitcnt vmcnt(0)
s_barrier
""")
for s in range(18):
    a(f"ds_read_b64_tr_b16 v[{64+4*s}:{65+4*s}], v16 offset:{s*2048}")
    a(f"ds_read_b64_tr_b16 v[{66+4*s}:{67+4*s}], v16 offset:{s*2048+256}")
for c in range(9):
    a(f"ds_read_b64_tr_b16 v[{136+4*c}:{137+4*c}], v17 offset:{c*4096}")
    a(f"ds_read_b64_tr_b16 v[{138+4*c}:{139+4*c}], v17 offset:{c*4096+2048}")
a("s_waitcnt lgkmcnt(0)")
for s in range(18):
    a(f"ds_read_b128 v[{172+4*s}:{175+4*s}], v18 offset:{s*512}")
for s in range(18):
    a(f"s_waitcnt lgkmcnt({min(15, 17-s)})")
    c = "0" if s == 0 else "v[20:23]"
    a(f"v_mfma_f32_16x16x32_bf16 v[20:23], v[{64+4*s}:{67+4*s}], v[{172+4*s}:{175+4*s}], {c}")
a.nop(8)
a("""
v_cvt_pk_bf16_f32 v24, v20, v21
v_cvt_pk_bf16_f32 v25, v22, v23
s_nop 1
v_permlane32_swap_b32 v24, v25
v_lshlrev_b32 v26, 16, v24
v_and_b32 v27, 0xffff0000, v24
v_mul_f32 v28, 0xbfb8aa3b, v26
v_mul_f32 v29, 0xbfb8aa3b, v27
v_exp_f32 v28, v28
v_exp_f32 v29, v29
v_lshlrev_b32 v30, 16, v25
v_add_f32 v28, 1.0, v28
v_add_f32 v29, 1.0, v29
v_rcp_f32 v28, v28
v_rcp_f32 v29, v29
v_and_b32 v31, 0xffff0000, v25
v_mul_f32 v26, v26, v28
v_mul_f32 v27, v27, v29
v_cvt_pk_bf16_f32 v26, v26, v27
v_and_b32 v27, 0xffff0000, v26
v_lshlrev_b32 v26, 16, v26
v_mul_f32 v26, v26, v30
v_mul_f32 v27, v27, v31
v_cvt_pk_bf16_f32 v26, v26, v27
""")
a(f"""
s_lshl_b32 s36, s3, 1
s_and_b32 s36, s36, 3
s_lshl_b32 s36, s36, 8
s_lshr_b32 s37, s3, 1
s_lshl_b32 s37, s37, 3
s_add_u32 s36, s36, s37
s_add_u32 s36, s36, {HH}
v_and_b32 v27, 31, v0
v_lshlrev_b32 v27, 4, v27      ; (g2*16+t)*16 = g2*256 + t*16
v_lshrrev_b32 v28, 5, v0
v_lshl_add_u32 v27, v28, 2, v27
v_add_u32 v27, s36, v27
ds_write_b32 v27, v26
v_lshlrev_b32 v28, 4, v0
v_add_u32 v28, {HH}, v28
s_waitcnt lgkmcnt(0)
s_barrier
ds_read_b128 v[24:27], v28
""")
a(f"""
v_mul_u32_u24 v29, 18432, v12
v_and_b32 v30, 15, v0
v_lshl_add_u32 v29, v30, 4, v29
s_mul_i32 s36, s3, 4*18432
s_lshl_b32 s37, s14, 7
s_add_u32 s36, s36, s37
s_add_u32 s36, s36, {PART}
s_waitcnt lgkmcnt(0)
""")
for c in range(9):
    a(f"v_mfma_f32_16x16x32_bf16 v[{64+4*c}:{67+4*c}], v[{136+4*c}:{139+4*c}], v[24:27], 0")
a("s_mov_b32 exec_lo, 0x00ff00ff\ns_mov_b32 exec_hi, 0x00ff00ff")
a.nop(6)
for c in range(9):
    a(f"buffer_store_dwordx4 v[{64+4*c}:{67+4*c}], v29, s[32:35], s36 offen")
    a(f"s_add_u32 s36, s36, {16*18432}")
a("K2_END:\ns_endpgm")

start("k3_kernel")
a("""
s_cmp_ge_u32 s2, 144
s_cbranch_scc1 K3_END
s_load_dwordx2 s[4:5], s[0:1], 0
s_load_dwordx2 s[6:7], s[0:1], 40
s_load_dwordx2 s[8:9], s[0:1], 56
v_lshrrev_b32 v1, 6, v0
v_lshlrev_b32 v2, 4, v0
v_readfirstlane_b32 s3, v1
v_and_b32 v0, 63, v0
s_mul_i32 s10, s2, 18432
""")
a(f"s_add_u32 s10, s10, {PART}")
a("s_waitcnt lgkmcnt(0)")
a.srd(12, 4, XB); a.srd(16, 6, XB); a.srd(20, 8, WS_USED)
a(f"""
v_and_b32 v3, 7, v0
v_lshlrev_b32 v3, 2, v3
s_mov_b32 s11, {SEL}
buffer_load_dword v4, v3, s[20:23], s11 offen
""")
for i in range(4):
    a(f"buffer_load_dwordx4 v[{8+4*i}:{11+4*i}], v2, s[20:23], s10 offen")
    a("s_add_u32 s10, s10, 4096")
a("""
v_mov_b32 v24, 0
v_mov_b32 v25, 0
v_mov_b32 v26, 0
v_mov_b32 v27, 0
s_cmp_ge_u32 s3, 2
s_cbranch_scc1 K3_NO5
buffer_load_dwordx4 v[24:27], v2, s[20:23], s10 offen
K3_NO5:
s_waitcnt vmcnt(0)
v_bfe_u32 v5, v0, 4, 1
v_lshrrev_b32 v6, 5, v0
v_lshl_add_u32 v5, v5, 1, v6
s_lshl_b32 s11, s2, 2
v_add_u32 v5, s11, v5
v_and_b32 v6, 0x7ff, v4
v_sub_u32 v6, 2047, v6
v_mul_u32_u24 v6, 1152, v6
v_lshl_add_u32 v5, v5, 1, v6
buffer_load_ushort v6, v5, s[12:15], 0 offen
""")
for k in range(4):
    a(f"v_add_f32 v{8+k}, v{8+k}, v{12+k}\nv_add_f32 v{16+k}, v{16+k}, v{20+k}")
for k in range(4):
    a(f"v_add_f32 v{8+k}, v{8+k}, v{16+k}")
for k in range(4):
    a(f"v_add_f32 v{8+k}, v{8+k}, v{24+k}")
a("""
s_nop 1
v_permlane32_swap_b32 v8, v9
v_permlane32_swap_b32 v10, v11
v_add_f32 v8, v8, v9
v_add_f32 v10, v10, v11
s_nop 1
v_permlane16_swap_b32 v8, v10
v_add_f32 v8, v8, v10
s_nop 1
v_add_f32_dpp v8, v8, v8 row_ror:8 row_mask:0xf bank_mask:0xf
v_lshrrev_b32 v2, 2, v2
ds_write_b32 v2, v8
v_lshlrev_b32 v3, 2, v0
s_waitcnt lgkmcnt(0)
s_barrier
s_cmp_lg_u32 s3, 0
s_cbranch_scc1 K3_END
ds_read_b32 v8, v3
ds_read_b32 v9, v3 offset:256
ds_read_b32 v10, v3 offset:512
ds_read_b32 v11, v3 offset:768
v_and_b32 v12, 0xffff0000, v4
v_ashrrev_i32 v13, 31, v12
v_not_b32 v13, v13
v_or_b32 v13, 0x80000000, v13
v_xor_b32 v12, v12, v13
v_and_b32 v12, 0xffff0000, v12
v_mul_f32 v12, 0xbfb8aa3b, v12
v_exp_f32 v12, v12
s_nop 0
v_add_f32 v12, 1.0, v12
v_rcp_f32 v12, v12
s_nop 0
v_cvt_pk_bf16_f32 v12, v12, v12
v_and_b32 v12, 0xffff0000, v12
s_waitcnt lgkmcnt(0)
v_add_f32 v8, v8, v9
v_add_f32 v10, v10, v11
v_add_f32 v8, v8, v10
v_cvt_pk_bf16_f32 v8, v8, v8
v_and_b32 v8, 0xffff0000, v8
v_mul_f32 v8, v8, v12
v_cvt_pk_bf16_f32 v8, v8, v8
v_and_b32 v8, 0xffff0000, v8
s_waitcnt vmcnt(0)
v_lshlrev_b32 v6, 16, v6
v_fma_f32 v8, v6, 0, v8
v_add_f32 v8, v6, v8
v_cvt_pk_bf16_f32 v8, v8, v8
s_mov_b32 exec_lo, 0x00ff00ff
s_mov_b32 exec_hi, 0x00ff00ff
buffer_store_short v8, v5, s[16:19], 0 offen
K3_END:
s_endpgm
""")
a('.section .rodata,"a"\n.p2align 6')
a.lines.append(kernel_desc("k1_kernel", 84))
a.lines.append(".p2align 6\n" + kernel_desc("k2_kernel", 244))
a.lines.append(".p2align 6\n" + kernel_desc("k3_kernel", 32))
open(sys.argv[1] if len(sys.argv) > 1 else "v1.s", "w").write(a.text())
```

```python
import sys
from asmlib import kernel_desc
s = open('v1.s').read()
def stamp(slot):
    return f"""
    s_memrealtime s[60:61]
    s_load_dwordx2 s[62:63], s[0:1], 56
    s_cmp_lg_u32 s2, 0
    s_cbranch_scc1 NOSTAMP{slot}
    s_waitcnt lgkmcnt(0)
    v_mov_b32 v1, s60
    v_mov_b32 v2, s61
    v_mov_b32 v3, 0
    global_store_dwordx2 v3, v[1:2], s[62:63] offset:{0x900+8*slot}
NOSTAMP{slot}:
    s_waitcnt lgkmcnt(0)
"""
def variant(a, b):
    t = s
    for i, k in enumerate(["k1_kernel", "k2_kernel", "k3_kernel"]):
        t = t.replace(f"\n{k}:\n", f"\n{k}:\n" + stamp(i).replace("v[1:2]", "v[2:3]").replace("v_mov_b32 v1, s60","v_mov_b32 v2, s60").replace("v_mov_b32 v2, s61","v_mov_b32 v3, s61").replace("v_mov_b32 v3, 0","v_mov_b32 v1, 0").replace("dwordx2 v3,","dwordx2 v1,"))
    lines = t.split('\n')
    idx = [i for i,l in enumerate(lines) if l.startswith('; @launch')]
    lines[idx[-1]+1:idx[-1]+1] = ["; @launch kernel=e_kernel grid=(1,1,1) block=(64,1,1) lds=0"]
    t = '\n'.join(lines)
    body = f"""
    s_memrealtime s[14:15]
    s_load_dwordx2 s[4:5], s[0:1], 56
    s_cmp_lg_u32 s2, 0
    s_cbranch_scc1 E_END
    s_waitcnt lgkmcnt(0)
    s_load_dwordx4 s[8:11], s[4:5], 0x900
    s_load_dwordx2 s[12:13], s[4:5], 0x910
    s_waitcnt lgkmcnt(0)
    s_sub_u32 s16, s{8+2*b}, s{8+2*a}
    s_min_u32 s16, s16, 10000
    s_memrealtime s[18:19]
    s_waitcnt lgkmcnt(0)
E_LOOP:
    s_memrealtime s[20:21]
    s_waitcnt lgkmcnt(0)
    s_sub_u32 s22, s20, s18
    s_cmp_lt_u32 s22, s16
    s_cbranch_scc1 E_LOOP
E_END:
    s_endpgm
"""
    t = t.replace('.section .rodata,"a"', '.globl e_kernel\n.p2align 8\n.type e_kernel,@function\ne_kernel:\n' + body + '\n.section .rodata,"a"')
    t += ".p2align 6\n" + kernel_desc("e_kernel", 8, 32)
    return t
open('p_00.s','w').write(variant(0,0))
open('p_03.s','w').write(variant(0,3))
open('p_01.s','w').write(variant(0,1))
open('p_12.s','w').write(variant(1,2))
open('p_23.s','w').write(variant(2,3))
```

```python
import sys, re
from asmlib import kernel_desc
inp, outp, nwg, stride, A, B, mode, scale = sys.argv[1:9]
off = int(sys.argv[9], 0) if len(sys.argv) > 9 else 0x380000
nwg, stride, A, B, scale = int(nwg), int(stride), int(A), int(B), int(scale)
s = open(inp).read()
lines = s.split('\n')
idx = [i for i,l in enumerate(lines) if l.startswith('; @launch')]
for i in idx:
    if 'kernel=' not in lines[i]:
        lines[i] = lines[i].replace('@launch ', '@launch kernel=standalone__moe_arch_mod__prompt_kernel ')
lines[idx[-1]+1:idx[-1]+1] = ["; @launch kernel=e_kernel grid=(1,1,1) block=(64,1,1) lds=0"]
t = '\n'.join(lines)
op = "v_max_u32" if mode == "max" else "v_min_u32"
body = f"""
    s_load_dwordx2 s[4:5], s[0:1], 56
    s_cmp_lg_u32 s2, 0
    s_cbranch_scc1 E_END
    s_waitcnt lgkmcnt(0)
    s_add_u32 s4, s4, {off}
    s_addc_u32 s5, s5, 0
    s_load_dword s8, s[4:5], {4*A}
"""
for k in range(4):
    body += f"""
    v_add_u32 v1, {64*k}, v0
    v_min_u32 v1, {nwg-1}, v1
    v_mul_u32_u24 v1, {stride}, v1
    global_load_dword v{8+k}, v1, s[4:5] offset:{4*A}
    global_load_dword v{12+k}, v1, s[4:5] offset:{4*B}
"""
body += """
    s_waitcnt vmcnt(0) lgkmcnt(0)
    s_sub_u32 s8, s8, 100000
"""
for k in range(8):
    body += f"    v_subrev_u32 v{8+k}, s8, v{8+k}\n"
body += f"""
    v_min_u32 v8, v8, v9
    v_min_u32 v10, v10, v11
    v_min_u32 v8, v8, v10
    {op} v12, v12, v13
    {op} v14, v14, v15
    {op} v12, v12, v14
"""
for dpp in ["row_shr:1 row_mask:0xf", "row_shr:2 row_mask:0xf", "row_shr:4 row_mask:0xf", "row_shr:8 row_mask:0xf", "row_bcast:15 row_mask:0xa", "row_bcast:31 row_mask:0xc"]:
    body += f"    s_nop 1\n    v_min_u32_dpp v8, v8, v8 {dpp} bank_mask:0xf\n    {op}_dpp v12, v12, v12 {dpp} bank_mask:0xf\n"
body += f"""
    s_nop 1
    v_readlane_b32 s10, v8, 63
    v_readlane_b32 s11, v12, 63
    s_nop 3
    s_sub_u32 s16, s11, s10
    s_mul_i32 s16, s16, {scale}
    s_min_u32 s16, s16, 20000
    s_memrealtime s[18:19]
    s_waitcnt lgkmcnt(0)
E_LOOP:
    s_memrealtime s[20:21]
    s_waitcnt lgkmcnt(0)
    s_sub_u32 s22, s20, s18
    s_cmp_lt_u32 s22, s16
    s_cbranch_scc1 E_LOOP
E_END:
    s_endpgm
"""
t = t.replace('.section .rodata,"a"', '.globl e_kernel\n.p2align 8\n.type e_kernel,@function\ne_kernel:\n' + body + '\n.section .rodata,"a"')
t += ".p2align 6\n" + kernel_desc("e_kernel", 16, 32)
open(outp, 'w').write(t)
```

```python
import sys, os
from asmlib import *

XB = 2048*1152
WB = 576*4608*2
WS_USED = 0x400000
KEYS = 0x1000
PART = 0x10000
STOFF = 0x380000
GU, DN, XS, HH, RED, TSEL = 0, 73728, 110592, 119808, 120832, 121856
LDS = 121984
NH = 112
ST = int(os.environ.get("ST", "0"))
PF1 = int(os.environ.get("PF1", "1"))
PF2 = int(os.environ.get("PF2", "1"))
B3MODE = os.environ.get("B3", "issue")
COPYFL = os.environ.get("COPYFL", "sc1")
SPIN = 20000
K = "standalone__moe_arch_mod__prompt_kernel"

a = Asm()
a.lines.append(HEADER + f"; @launch grid=(256,1,1) block=(512,1,1) lds={LDS}\n"
  '.amdgcn_target "amdgcn-amd-amdhsa--gfx950"\n.text')
a(f".globl {K}\n.p2align 8\n.type {K},@function\n{K}:")

_st = {}
def stamp(i, wait=False):
    if ST:
        a(f"s_memrealtime s[{64+2*(i%16)}:{65+2*(i%16)}]")
        if wait: a("s_waitcnt lgkmcnt(0)")
def flush_stamps(idx, cond=None, lbl=None):
    if not ST: return
    a("s_mov_b64 exec, -1")
    if cond is not None:
        a(f"s_cmp_lg_u32 s3, {cond}\ns_cbranch_scc1 {lbl}")
    a("s_waitcnt vmcnt(0)")
    stamp(idx[-1])
    a("s_waitcnt lgkmcnt(0)")
    m = 0
    for i in idx:
        a(f"v_writelane_b32 v1, s{64+2*(i%16)}, {i}")
        m |= 1 << i
    a(f"v_lshlrev_b32 v2, 2, v0\ns_lshl_b32 s62, s2, 7\ns_add_u32 s62, s62, {STOFF}")
    a(f"s_mov_b32 exec_lo, {hex(m)}\ns_mov_b32 exec_hi, 0")
    a(f"buffer_store_dword v1, v2, s[28:31], s62 offen")
    if lbl is not None: a(f"{lbl}:")

def kwait():
    a("s_waitcnt lgkmcnt(0)")
    a("s_load_dwordx2 s[20:21], s[18:19], 0")
def nplus():
    a("s_add_u32 s20, s20, 1\ns_addc_u32 s21, s21, 0")

stamp(0);
a("""
s_cmp_ge_u32 s2, 256
s_cbranch_scc1 END
s_load_dwordx16 s[4:19], s[0:1], 0
v_lshrrev_b32 v1, 6, v0
v_and_b32 v0, 63, v0
v_readfirstlane_b32 s3, v1
s_nop 1
s_cmp_ge_u32 s3, 4
s_cbranch_scc1 UPPER
""")
a(f"s_cmp_ge_u32 s2, {NH}\ns_cbranch_scc1 FFN")

a(f"""
s_mul_i32 s22, s3, {NH}
s_add_u32 s22, s22, s2
s_cmp_ge_u32 s22, 256
s_cbranch_scc1 END
v_lshrrev_b32 v1, 3, v0
v_and_b32 v2, 7, v0
v_lshlrev_b32 v2, 4, v2
v_mul_u32_u24 v3, 1152, v1
v_add_u32 v3, v3, v2
s_lshl_b32 s23, s22, 3
s_mul_i32 s22, s22, 9216
s_lshr_b32 s44, s2, 3
s_lshl_b32 s44, s44, 6
s_and_b32 s45, s2, 7
s_mul_i32 s45, s45, 1152
s_add_u32 s45, s45, {192*9216}
s_cmp_eq_u32 s3, 2
s_cselect_b32 s45, 0x7000000, s45
""")
for blk in range(4):
    a(f"""
v_add_u32 v4, s44, v0
v_mul_u32_u24 v5, 7282, v4
v_lshrrev_b32 v5, 16, v5
v_mul_u32_u24 v6, 9, v5
v_sub_u32 v4, v4, v6
v_mul_u32_u24 v5, 9216, v5
v_lshl_add_u32 v4, v4, 7, v5
v_add_u32 v{80+blk}, s45, v4
s_add_u32 s44, s44, {14*64}
""")
a("s_cmp_eq_u32 s3, 0")
kwait()
stamp(1)
a("s_cselect_b32 s40, s8, s10\ns_cselect_b32 s41, s9, s11")
a.srd(24, 4, XB); a.srd(32, 6, 1152)
for i in range(9):
    a(f"buffer_load_dwordx4 v[{8+4*i}:{11+4*i}], v3, s[24:27], s22 offen offset:{128*i}")
for i in range(9):
    a(f"buffer_load_dwordx4 v[{44+4*i}:{47+4*i}], v2, s[32:35], 0 offen offset:{128*i}")
a(f"s_and_b32 s41, s41, 0xffff\ns_mov_b32 s42, {WB}\ns_mov_b32 s43, 0x20000")
npf = 0
if PF1:
    a("buffer_load_dword v84, v80, s[40:43], 0 offen\nbuffer_load_dword v84, v81, s[40:43], 0 offen")
    npf = 2
a.srd(28, 18, WS_USED); a.srd(36, 14, XB)
for k in range(4):
    a(f"v_mov_b32 v{4+k}, 0")
a("""
v_add_u32 v85, s23, v1
v_and_b32 v86, 3, v1            ; k
v_mul_u32_u24 v87, 5, v86
v_cmp_ne_u32 vcc, 0, v86
v_sub_u32 v88, 2047, v85
v_lshlrev_b32 v88, 5, v88
v_lshlrev_b32 v85, 2, v85
s_waitcnt lgkmcnt(0)
s_barrier
""")
nplus()
a("""
v_mov_b32 v86, s20
v_lshrrev_b32 v87, v87, v86
v_cndmask_b32 v86, 0, v86, vcc
v_add_u32 v86, v86, v87
v_and_or_b32 v88, v86, 31, v88
""")
for i in range(9):
    a(f"s_waitcnt vmcnt({8-i+npf})")
    for k in range(4):
        a(f"v_dot2c_f32_bf16 v{4+k}, v{8+4*i+k}, v{44+4*i+k}")
stamp(2)
a.nop(3)
a(f"""
v_add_f32 v4, v4, v5
v_add_f32 v6, v6, v7
v_add_f32 v4, v4, v6
s_mov_b32 s46, {KEYS}
s_nop 0
v_add_f32_dpp v4, v4, v4 quad_perm:[1,0,3,2] row_mask:0xf bank_mask:0xf
s_nop 1
v_add_f32_dpp v4, v4, v4 quad_perm:[2,3,0,1] row_mask:0xf bank_mask:0xf
s_nop 1
v_add_f32_dpp v4, v4, v4 row_half_mirror row_mask:0xf bank_mask:0xf
v_cvt_pk_bf16_f32 v5, v4, v4
v_cmp_o_f32 vcc, v4, v4
v_ashrrev_i32 v6, 31, v5
v_or_b32 v6, 0x80000000, v6
v_xor_b32 v6, v6, v5
v_cndmask_b32 v6, 0, v6, vcc
v_and_b32 v6, 0xffff0000, v6
v_or_b32 v6, v6, v88
s_mov_b32 exec_lo, 0x01010101
s_mov_b32 exec_hi, 0x01010101
buffer_store_dword v6, v85, s[28:31], s46 offen sc1
s_mov_b64 exec, -1
""")
stamp(3)
if PF2:
    a("buffer_load_dword v84, v82, s[40:43], 0 offen\nbuffer_load_dword v84, v83, s[40:43], 0 offen")
a("""
v_mov_b32 v80, 0x207
v_cmp_class_f32 vcc, v4, v80
s_cbranch_vccz R_FIN
s_mov_b32 s44, 0x7f807f80
s_mov_b32 s45, 0x00400040
""")
for i in range(36):
    r = 8+i
    a(f"v_and_b32 v80, s44, v{r}\nv_add_u32 v80, 0x00800080, v80\nv_lshrrev_b32 v80, 9, v80\nv_and_or_b32 v{r}, v80, s45, v{r}")
a(f"""
R_FIN:
v_mov_b32 v80, {TSEL}
s_barrier
ds_read_b32 v80, v80
s_waitcnt lgkmcnt(0)
v_cmp_lt_u32 vcc, v6, v80
s_and_saveexec_b64 s[44:45], vcc
""")
stamp(4)
a("s_cbranch_execz R_DONE")
for i in range(9):
    a(f"buffer_store_dwordx4 v[{8+4*i}:{11+4*i}], v3, s[36:39], s22 offen offset:{128*i} {COPYFL}")
a("R_DONE:")
stamp(5)
flush_stamps([0,1,2,3,4,5,6], 0, "R_NOST")
a("s_endpgm")

a(f"""
FFN:
s_sub_u32 s44, s2, {NH}
s_and_b32 s22, s44, 7
s_mul_i32 s22, s22, 18
s_lshr_b32 s44, s44, 3
s_add_u32 s22, s22, s44          ; s22 = colblock
v_lshrrev_b32 v2, 2, v0
v_mul_u32_u24 v2, 9216, v2
s_lshl_b32 s44, s22, 6
v_add_u32 v2, s44, v2
v_and_b32 v3, 3, v0
v_lshrrev_b32 v4, 5, v0
v_xor_b32 v3, v3, v4
s_and_b32 s45, s3, 1             ; m
s_lshl_b32 s44, s45, 1
v_xor_b32 v3, s44, v3
v_lshl_add_u32 v3, v3, 4, v2
v_lshrrev_b32 v5, 3, v0
v_mul_u32_u24 v6, 1152, v5
v_lshrrev_b32 v5, 1, v5
v_lshlrev_b32 v5, 1, v5
v_and_b32 v7, 7, v0
v_xor_b32 v5, v5, v7
v_lshl_add_u32 v5, v5, 4, v6
s_lshr_b32 s46, s3, 1
s_and_b32 s47, s22, 1
s_mul_i32 s47, s47, 6
s_add_u32 s48, s46, s47          ; n own
s_sub_u32 s49, 6, s47
s_add_u32 s49, s49, s46          ; n partner
s_add_u32 s50, s46, 12           ; n helper
s_mul_i32 s51, s45, 36864
s_mul_i32 s52, s22, 32*1152
s_mul_i32 s53, s3, 8*1152
s_add_u32 s52, s52, s53
s_lshl_b32 s53, s3, 10
s_add_u32 s53, s53, {DN}
s_cmp_eq_u32 s45, 0
""")
kwait()
stamp(1)
a("s_cselect_b32 s32, s8, s10\ns_cselect_b32 s33, s9, s11")
a(f"s_and_b32 s33, s33, 0xffff\ns_mov_b32 s34, {WB}\ns_mov_b32 s35, 0x20000")
a.srd(36, 12, WB)
def gu(nreg, cnt):
    a(f"s_mul_i32 s54, s{nreg}, 147456\ns_lshl_b32 s55, s{nreg}, 10\ns_add_u32 m0, s55, s51")
    a("s_nop 0")
    for y in range(cnt):
        a("buffer_load_dwordx4 v3, s[32:35], s54 offen lds")
        if y != cnt-1:
            a("s_add_u32 m0, m0, 2048\ns_add_u32 s54, s54, 2*147456")
gu(48, 3)
a("s_mov_b32 m0, s53\ns_nop 0")
for c in range(9):
    a("buffer_load_dwordx4 v5, s[36:39], s52 offen lds")
    if c != 8: a("s_add_u32 m0, m0, 4096\ns_add_u32 s52, s52, 128")
stamp(2)
gu(49, 3)
gu(50, 12)
stamp(3)
a.srd(28, 18, WS_USED)
a(f"""
v_lshrrev_b32 v12, 4, v0        ; g
v_bfe_u32 v13, v0, 2, 2         ; r
v_bfe_u32 v14, v0, 1, 1         ; m
v_and_b32 v15, 1, v0            ; ch
v_lshlrev_b32 v16, 3, v12
v_add_u32 v16, v16, v13         ; 8g+r
v_lshlrev_b32 v16, 6, v16       ; *64
v_mul_u32_u24 v17, 36864, v14
v_add_u32 v16, v16, v17
v_and_b32 v17, 1, v12
v_lshl_add_u32 v17, v14, 1, v17 ; 2m + (g&1)
v_xor_b32 v17, s3, v17
v_lshl_add_u32 v16, v17, 4, v16
v_lshl_add_u32 v16, v15, 3, v16
v_lshl_add_u32 v17, v12, 2, v13 ; f = 4g + r
v_bfe_u32 v18, v17, 1, 2        ; sigma
v_xor_b32 v18, s3, v18
v_lshlrev_b32 v17, 7, v17
v_lshl_add_u32 v17, v18, 5, v17
v_and_b32 v18, 3, v0
v_lshl_add_u32 v17, v18, 3, v17
v_add_u32 v17, {DN}, v17
v_and_b32 v18, 7, v0            ; t
v_and_b32 v19, 1, v12
v_lshlrev_b32 v19, 2, v19
v_xor_b32 v18, v18, v19         ; t ^ ((g&1)<<2)
v_lshlrev_b32 v18, 4, v18
v_lshl_add_u32 v18, v12, 7, v18
v_add_u32 v18, {XS}, v18
s_lshl_b32 s44, s3, 1
s_and_b32 s44, s44, 3
s_lshl_b32 s44, s44, 8
s_lshr_b32 s45, s3, 1
s_lshl_b32 s45, s45, 3
s_add_u32 s44, s44, s45
s_add_u32 s44, s44, {HH}
v_and_b32 v19, 31, v0
v_lshlrev_b32 v19, 4, v19
v_lshrrev_b32 v28, 5, v0
v_lshl_add_u32 v19, v28, 2, v19
v_add_u32 v19, s44, v19
v_lshlrev_b32 v28, 4, v0
v_add_u32 v28, {HH}, v28
v_mul_u32_u24 v29, 18432, v12
v_and_b32 v30, 15, v0
v_lshl_add_u32 v29, v30, 4, v29
s_mul_i32 s52, s3, 4*18432
s_lshl_b32 s44, s22, 7
s_add_u32 s52, s52, s44
s_add_u32 s52, s52, {PART}
v_mov_b32 v32, 0xfff
s_waitcnt lgkmcnt(0)
""")
def ptags():
    nplus()
    a("""
s_lshr_b64 s[44:45], s[20:21], 12
s_add_u32 s57, s44, s20
s_lshr_b64 s[44:45], s[20:21], 24
s_add_u32 s58, s44, s20
s_lshr_b64 s[44:45], s[20:21], 36
s_add_u32 s59, s44, s20
s_and_b32 s56, s20, 0xfff
s_and_b32 s57, s57, 0xfff
s_and_b32 s58, s58, 0xfff
s_and_b32 s59, s59, 0xfff
""")
ptags()
a("s_waitcnt vmcnt(0)")
stamp(4)
a("s_barrier")
stamp(5, True)
for s in range(18):
    a(f"ds_read_b64_tr_b16 v[{64+4*s}:{65+4*s}], v16 offset:{s*2048}")
    a(f"ds_read_b64_tr_b16 v[{66+4*s}:{67+4*s}], v16 offset:{s*2048+256}")
    a(f"ds_read_b128 v[{172+4*s}:{175+4*s}], v18 offset:{s*512}")
    if s >= 4:
        t = s-4
        a("s_waitcnt lgkmcnt(12)")
        c = "0" if t == 0 else "v[20:23]"
        a(f"v_mfma_f32_16x16x32_bf16 v[20:23], v[{64+4*t}:{67+4*t}], v[{172+4*t}:{175+4*t}], {c}")
dn = []
for c in range(9):
    dn.append(f"ds_read_b64_tr_b16 v[{136+4*c}:{137+4*c}], v17 offset:{c*4096}")
    dn.append(f"ds_read_b64_tr_b16 v[{138+4*c}:{139+4*c}], v17 offset:{c*4096+2048}")
for t in range(14, 18):
    for q in range(3): a(dn.pop(0))
    a("s_waitcnt lgkmcnt(12)")
    a(f"v_mfma_f32_16x16x32_bf16 v[20:23], v[{64+4*t}:{67+4*t}], v[{172+4*t}:{175+4*t}], v[20:23]")
for d in dn: a(d)
a.nop(2)
stamp(6)
a("""
v_cvt_pk_bf16_f32 v24, v20, v21
v_cvt_pk_bf16_f32 v25, v22, v23
s_nop 1
v_permlane32_swap_b32 v24, v25
v_lshlrev_b32 v26, 16, v24
v_and_b32 v27, 0xffff0000, v24
v_mul_f32 v20, 0xbfb8aa3b, v26
v_mul_f32 v21, 0xbfb8aa3b, v27
v_exp_f32 v20, v20
v_exp_f32 v21, v21
v_lshlrev_b32 v30, 16, v25
v_add_f32 v20, 1.0, v20
v_add_f32 v21, 1.0, v21
v_rcp_f32 v20, v20
v_rcp_f32 v21, v21
v_and_b32 v31, 0xffff0000, v25
v_mul_f32 v26, v26, v20
v_mul_f32 v27, v27, v21
v_cvt_pk_bf16_f32 v26, v26, v27
v_and_b32 v27, 0xffff0000, v26
v_lshlrev_b32 v26, 16, v26
v_mul_f32 v26, v26, v30
v_mul_f32 v27, v27, v31
v_cvt_pk_bf16_f32 v26, v26, v27
ds_write_b32 v19, v26
s_waitcnt lgkmcnt(0)
s_barrier
ds_read_b128 v[24:27], v28
""")
stamp(7)
a("s_waitcnt lgkmcnt(0)")
for c in range(9):
    a(f"v_mfma_f32_16x16x32_bf16 v[{64+4*c}:{67+4*c}], v[{136+4*c}:{139+4*c}], v[24:27], 0")
a("s_mov_b32 exec_lo, 0x00ff00ff\ns_mov_b32 exec_hi, 0x00ff00ff")
for c in range(9):
    for k in range(4):
        a(f"v_bfi_b32 v{64+4*c+k}, v32, s{56+k}, v{64+4*c+k}")
    a(f"buffer_store_dwordx4 v[{64+4*c}:{67+4*c}], v29, s[28:31], s52 offen sc1")
    if c != 8: a(f"s_add_u32 s52, s52, {16*18432}")
stamp(8)
if B3MODE == "issue": a("s_barrier")
flush_stamps([0,1,2,3,4,5,6,7,8,9], 0, "C_NOST")
a("s_endpgm")

a(f"""
UPPER:
s_cmp_eq_u32 s3, 4
s_cbranch_scc1 SEL
s_cmp_lt_u32 s2, {NH}
s_cbranch_scc1 END
""")
kwait()
a.srd(28, 18, WS_USED); a.srd(40, 14, XB)
a("v_mov_b32 v5, 0")
a("s_waitcnt lgkmcnt(0)")
ptags()
a("s_branch GATHER")

E0 = 96
D0 = 64
Cb0, Cb1, K1, K0, KA, KB, M1, M0, MA, MB = range(40, 50)
a("SEL:")
stamp(16)
a(f"""
v_and_b32 v2, 1, v0
v_bfe_u32 v3, v0, 1, 1
v_bfe_i32 v4, v0, 5, 1
v_bfe_i32 v5, v0, 4, 1
v_add_u32 v{Cb0}, -1, v2        ; b0==0 ? -1 : 0
v_add_u32 v{Cb1}, -1, v3
v_xor_b32 v{K1}, v{Cb1}, v4
v_xor_b32 v{K0}, v{Cb0}, v4
v_not_b32 v{KA}, v4
v_mov_b32 v{KB}, v4
v_xor_b32 v{M1}, v{Cb1}, v5
v_xor_b32 v{M0}, v{Cb0}, v5
v_not_b32 v{MA}, v5
v_mov_b32 v{MB}, v5
v_lshlrev_b32 v1, 4, v0
v_lshlrev_b32 v2, 7, v0          ; (4l)<<5
v_sub_u32 v2, {2047<<5}, v2
v_lshrrev_b32 v12, 3, v0
v_lshlrev_b32 v12, 4, v12        ; chunk*16
""")
kwait()
a.srd(28, 18, WS_USED); a.srd(24, 4, XB); a.srd(40, 14, XB)
a(f"s_mov_b32 s46, {KEYS}\ns_mov_b32 s47, {KEYS+4096}\ns_mov_b32 s48, {SPIN}")
a("s_waitcnt lgkmcnt(0)")
a(f"s_cmp_ge_u32 s2, {NH}\ns_cbranch_scc1 S_NOBAR\ns_barrier\nS_NOBAR:")
ptags()
a("""
s_lshr_b32 s44, s20, 5
s_add_u32 s51, s44, s20
s_lshr_b32 s44, s20, 10
s_add_u32 s52, s44, s20
s_lshr_b32 s44, s20, 15
s_add_u32 s53, s44, s20
s_and_b32 s50, s20, 31
s_and_b32 s51, s51, 31
s_and_b32 s52, s52, 31
s_and_b32 s53, s53, 31
""")
for k in range(4):
    a(f"s_sub_u32 s{50+k}, s{50+k}, {32*k}")
for i in range(8):
    for k in range(4):
        if i == 0: a(f"v_add_u32 v{E0+k}, s{50+k}, v2")
        else: a(f"v_add_u32 v{E0+4*i+k}, {hex((-8192) & 0xffffffff)}, v{E0+4*(i-1)+k}")
stamp(17)
a("POLL:")
for i in range(8):
    a(f"buffer_load_dwordx4 v[{D0+4*i}:{D0+4*i+3}], v1, s[28:31], s{46+i//4} offen offset:{1024*(i%4)} sc1")
a("v_mov_b32 v6, 0\nv_mov_b32 v7, 0\nv_mov_b32 v8, 0")
for i in range(8):
    a(f"s_waitcnt vmcnt({7-i})")
    d = D0+4*i; e = E0+4*i
    a(f"""
v_med3_u32 v9, v6, v{d}, v{d+1}
v_max3_u32 v6, v6, v{d}, v{d+1}
v_bitop3_b32 v8, v{d}, v{e}, v8 bitop3:0xbe
v_max_u32 v7, v7, v9
v_med3_u32 v9, v6, v{d+2}, v{d+3}
v_max3_u32 v6, v6, v{d+2}, v{d+3}
v_bitop3_b32 v8, v{d+1}, v{e+1}, v8 bitop3:0xbe
v_max_u32 v7, v7, v9
v_bitop3_b32 v8, v{d+2}, v{e+2}, v8 bitop3:0xbe
v_bitop3_b32 v8, v{d+3}, v{e+3}, v8 bitop3:0xbe
""")
a("""
v_and_b32 v8, 0xffff, v8
v_cmp_ne_u32 vcc, 0, v8
s_sub_u32 s48, s48, 1
s_cbranch_vccz POLL_OK
s_cbranch_scc0 POLL
POLL_OK:
""")
stamp(18)
A, B, P, Q = 6, 7, 9, 10
X1, X2, X3 = "quad_perm:[1,0,3,2]", "quad_perm:[2,3,0,1]", "quad_perm:[3,2,1,0]"
DM = "row_mask:0xf bank_mask:0xf"
def cross(perm, c, swap):
    sa, sb = (B, A) if swap else (A, B)
    a(f"v_mov_b32_dpp v{P}, v{sa} {perm} {DM}\nv_mov_b32_dpp v{Q}, v{sb} {perm} {DM}")
    a(f"v_med3_u32 v{A}, v{A}, v{P}, v{c}\nv_med3_u32 v{B}, v{B}, v{Q}, v{c}\ns_nop 0")
def inlane(ca=None, cb=None):
    if ca is None:
        a(f"v_max_u32 v{P}, v{A}, v{B}\nv_min_u32 v{B}, v{A}, v{B}\nv_mov_b32 v{A}, v{P}\ns_nop 1")
    else:
        a(f"v_med3_u32 v{P}, v{A}, v{B}, v{ca}\nv_med3_u32 v{B}, v{A}, v{B}, v{cb}\nv_mov_b32 v{A}, v{P}\ns_nop 1")
def swaplevel(op):
    a(f"v_mov_b32 v{P}, v{A}\nv_mov_b32 v{Q}, v{B}\ns_nop 1\n{op} v{A}, v{P}\n{op} v{B}, v{Q}")
    a(f"v_max_u32 v{A}, v{A}, v{P}\nv_max_u32 v{B}, v{B}, v{Q}\ns_nop 0")
cross(X1, Cb0, True); inlane()
cross(X3, K1, True); cross(X1, K0, False); inlane(KA, KB)
swaplevel("v_permlane32_swap_b32")
cross(X2, M1, False); cross(X1, M0, False); inlane(MA, MB)
swaplevel("v_permlane16_swap_b32")
cross(X2, Cb1, False); cross(X1, Cb0, False); inlane()
a(f"v_max_u32_dpp v{P}, v{B}, v{A} row_mirror {DM}\nv_max_u32_dpp v{B}, v{A}, v{B} row_mirror {DM}\nv_mov_b32 v{A}, v{P}\ns_nop 1")
cross(X2, Cb1, False); cross(X1, Cb0, False); inlane()
a(f"v_max_u32_dpp v{A}, v{B}, v{A} row_half_mirror {DM}")
a("SEL_HAVE:")
stamp(19)
a(f"""
v_bfe_u32 v11, v{A}, 5, 11
v_sub_u32 v11, 2047, v11
v_mul_u32_u24 v11, 1152, v11
s_cmp_lt_u32 s2, {NH}
s_cbranch_scc1 S_NOX
v_add_u32 v13, v11, v12
s_mov_b32 m0, {XS}
s_mov_b32 s44, 0
""")
for i in range(9):
    a("buffer_load_dwordx4 v13, s[24:27], s44 offen lds")
    if i != 8: a("s_add_u32 m0, m0, 1024\ns_add_u32 s44, s44, 128")
a(f"""
S_NOX:
v_min_u32_dpp v9, v{A}, v{A} {X1} {DM}
s_nop 1
v_min_u32_dpp v9, v9, v9 {X2} {DM}
s_nop 1
v_min_u32_dpp v9, v9, v9 row_half_mirror {DM}
v_mov_b32 v10, 0
""")
for q in range(32):
    a(f"v_cmp_ge_u32 vcc, v{D0+q}, v9\nv_addc_co_u32 v10, vcc, 0, v10, vcc") if False else None
for q in range(0, 32, 2):
    a(f"v_cmp_ge_u32 vcc, v{D0+q}, v9\nv_cmp_ge_u32 s[44:45], v{D0+q+1}, v9\ns_nop 0\nv_addc_co_u32 v10, vcc, 0, v10, vcc\nv_addc_co_u32 v10, s[44:45], 0, v10, s[44:45]")
a("""
v_cmp_lt_u32 vcc, 2, v10
s_cbranch_vccnz FALLBACK
SEL_DONE:
""")
stamp(20)
a(f"""
s_cmp_ge_u32 s2, {NH}
s_cbranch_scc1 S_FFN
v_mov_b32 v10, {TSEL}
ds_write_b32 v10, v9
s_waitcnt lgkmcnt(0)
s_barrier
""")
flush_stamps([16,17,18,19,20,21])
a("s_endpgm")
a("""
FALLBACK:
s_mov_b32 s44, 0
s_mov_b32 s49, 0
v_bfe_u32 v14, v0, 3, 1
v_lshlrev_b32 v14, 2, v14
v_xor_b32 v14, v14, v0
v_and_b32 v14, 7, v14
FB_LOOP:
""")
for q in range(0, 32, 2):
    a(f"v_subrev_u32 v8, s44, v{D0+q}\nv_subrev_u32 v9, s44, v{D0+q+1}")
    a("v_max_u32 v7, v8, v9" if q == 0 else "v_max3_u32 v7, v7, v8, v9")
for dpp in ["row_shr:1 row_mask:0xf", "row_shr:2 row_mask:0xf", "row_shr:4 row_mask:0xf", "row_shr:8 row_mask:0xf", "row_bcast:15 row_mask:0xa", "row_bcast:31 row_mask:0xc"]:
    a(f"s_nop 1\nv_max_u32_dpp v7, v7, v7 {dpp} bank_mask:0xf")
a(f"""
s_nop 1
v_readlane_b32 s45, v7, 63
v_cmp_eq_u32 vcc, s49, v14
s_nop 3
s_add_u32 s44, s44, s45
v_mov_b32 v8, s44
v_cndmask_b32 v{A}, v{A}, v8, vcc
s_add_u32 s49, s49, 1
s_cmp_lt_u32 s49, 8
s_cbranch_scc1 FB_LOOP
v_mov_b32 v9, s44
v_bfe_u32 v11, v{A}, 5, 11
v_sub_u32 v11, 2047, v11
v_mul_u32_u24 v11, 1152, v11
s_cmp_lt_u32 s2, {NH}
s_cbranch_scc1 SEL_DONE
v_add_u32 v13, v11, v12
s_mov_b32 m0, {XS}
s_mov_b32 s44, 0
FB_X:
buffer_load_dwordx4 v13, s[24:27], s44 offen lds
s_add_u32 m0, m0, 1024
s_add_u32 s44, s44, 128
s_cmp_lt_u32 s44, 1152
s_cbranch_scc1 FB_X
s_branch SEL_DONE
""")
a(f"""
S_FFN:
s_sub_u32 s44, s2, {NH}
v_bfe_u32 v5, v0, 4, 1
v_lshrrev_b32 v4, 5, v0
v_lshl_add_u32 v5, v5, 1, v4
s_lshl_b32 s44, s44, 2
v_add_u32 v5, s44, v5
v_lshl_add_u32 v5, v5, 1, v11
buffer_load_ushort v4, v5, s[24:27], 0 offen
v_and_b32 v3, 0xffff0000, v{A}
v_ashrrev_i32 v13, 31, v3
v_not_b32 v13, v13
v_or_b32 v13, 0x80000000, v13
v_xor_b32 v3, v3, v13
v_and_b32 v3, 0xffff0000, v3
v_mul_f32 v3, 0xbfb8aa3b, v3
v_exp_f32 v3, v3
s_nop 0
v_add_f32 v3, 1.0, v3
v_rcp_f32 v3, v3
s_nop 0
v_cvt_pk_bf16_f32 v3, v3, v3
v_and_b32 v3, 0xffff0000, v3
s_waitcnt vmcnt(0)
""")
stamp(21)
a(f"""
GATHER:
s_sub_u32 s44, s2, {NH}
s_mul_i32 s46, s44, 18432
s_sub_u32 s45, s3, 4
s_lshl_b32 s47, s45, 10
s_add_u32 s46, s46, s47
s_add_u32 s46, s46, {PART}
s_add_u32 s47, s46, 4096
s_add_u32 s50, s46, 8192
s_add_u32 s51, s46, 12288
s_add_u32 s52, s46, 16384
v_lshlrev_b32 v1, 4, v0
v_lshlrev_b32 v2, 2, v0
s_lshl_b32 s45, s45, 8
s_add_u32 s45, s45, {RED}
v_add_u32 v14, s45, v2
v_add_u32 v2, {RED}, v2
v_mov_b32 v32, s56
v_mov_b32 v33, s57
v_mov_b32 v34, s58
v_mov_b32 v35, s59
s_mov_b32 s48, {SPIN}
s_barrier
s_barrier
s_barrier
""")
stamp(22)
a("""
G_POLL:
buffer_load_dwordx4 v[16:19], v1, s[28:31], s46 offen sc1
buffer_load_dwordx4 v[20:23], v1, s[28:31], s47 offen sc1
buffer_load_dwordx4 v[24:27], v1, s[28:31], s50 offen sc1
buffer_load_dwordx4 v[28:31], v1, s[28:31], s51 offen sc1
s_cmp_ge_u32 s3, 6
s_cbranch_scc1 G_NO5
buffer_load_dwordx4 v[32:35], v1, s[28:31], s52 offen sc1
G_NO5:
v_mov_b32 v8, 0
s_waitcnt vmcnt(0)
""")
for i in range(5):
    for k in range(4):
        a(f"v_bitop3_b32 v8, v{16+4*i+k}, s{56+k}, v8 bitop3:0xbe")
a("""
v_and_b32 v8, 0xfff, v8
v_cmp_ne_u32 vcc, 0, v8
s_sub_u32 s48, s48, 1
s_cbranch_vccz G_OK
s_cbranch_scc0 G_POLL
G_OK:
""")
stamp(23)
for k in range(4):
    a(f"v_add_f32 v{16+k}, v{16+k}, v{20+k}\nv_add_f32 v{24+k}, v{24+k}, v{28+k}")
for k in range(4):
    a(f"v_add_f32 v{16+k}, v{16+k}, v{24+k}")
for k in range(4):
    a(f"v_add_f32 v{16+k}, v{16+k}, v{32+k}")
a(f"""
s_nop 1
v_permlane32_swap_b32 v16, v17
v_permlane32_swap_b32 v18, v19
v_add_f32 v16, v16, v17
v_add_f32 v18, v18, v19
s_nop 1
v_permlane16_swap_b32 v16, v18
v_add_f32 v16, v16, v18
s_nop 1
v_add_f32_dpp v16, v16, v16 row_ror:8 row_mask:0xf bank_mask:0xf
ds_write_b32 v14, v16
s_waitcnt lgkmcnt(0)
s_barrier
s_cmp_lg_u32 s3, 4
s_cbranch_scc1 END
ds_read_b32 v8, v2
ds_read_b32 v9, v2 offset:256
ds_read_b32 v10, v2 offset:512
ds_read_b32 v11, v2 offset:768
v_lshlrev_b32 v4, 16, v4
s_waitcnt lgkmcnt(0)
v_add_f32 v8, v8, v9
v_add_f32 v10, v10, v11
v_add_f32 v8, v8, v10
v_cvt_pk_bf16_f32 v8, v8, v8
v_and_b32 v8, 0xffff0000, v8
v_mul_f32 v8, v8, v3
v_cvt_pk_bf16_f32 v8, v8, v8
v_and_b32 v8, 0xffff0000, v8
v_fma_f32 v8, v4, 0, v8
v_add_f32 v8, v4, v8
v_cvt_pk_bf16_f32 v8, v8, v8
s_mov_b32 exec_lo, 0x00ff00ff
s_mov_b32 exec_hi, 0x00ff00ff
buffer_store_short v8, v5, s[40:43], 0 offen sc1
s_cmp_lg_u32 s2, {NH}
s_cbranch_scc1 F_NOE
s_mov_b64 exec, 1
v_mov_b32 v8, s20
v_mov_b32 v9, s21
v_mov_b32 v10, 0
buffer_store_dwordx2 v[8:9], v10, s[28:31], 0 offen sc1
F_NOE:
""")
stamp(24)
flush_stamps([16,17,18,19,20,21,22,23,24,25])
a("END:\ns_endpgm")
a('.section .rodata,"a"\n.p2align 6')
a.lines.append(kernel_desc(K, 244, 100))
open(sys.argv[1] if len(sys.argv) > 1 else "v2.s", "w").write(a.text())
```

```python
import sys, os
from asmlib import *

XB = 2048*1152
WB = 576*4608*2
WS_USED = 0x400000
KEYS = 0x1000
DONE = 0x4000
HB0 = 0x10000
HB1 = 0x30000
PART = 0x50000
STOFF = 0x380000
GU, DN, XS, FLG = 0, 73728, 110592, 119808
LDS = 119936
NH = 112
env = lambda k, d: os.environ.get(k, d)
ST = int(env("ST", "0"))
OWN = int(env("OWN", "4"))
FB = int(env("FB", "2"))
PF1 = int(env("PF1", "2"))
GATE = int(env("GATE", "10"))
PRIO = int(env("PRIO", "3"))
CW = int(env("CW", "2"))
B2MODE = "issue"
XD = int(env("XD", "1"))
COPYFL = env("COPYFL", "sc1")
FINFL = env("FINFL", "sc1")
HLOC = int(env("HLOC", "10"))
SPIN = 20000
K = "standalone__moe_arch_mod__prompt_kernel"

a = Asm()
a.lines.append(HEADER + f"; @launch grid=(256,1,1) block=(384,1,1) lds={LDS}\n"
  '.amdgcn_target "amdgcn-amd-amdhsa--gfx950"\n.text')
a(f".globl {K}\n.p2align 8\n.type {K},@function\n{K}:")

def stamp(i, wait=False):
    if ST:
        a(f"s_memrealtime s[{64+2*(i%16)}:{65+2*(i%16)}]")
        if wait: a("s_waitcnt lgkmcnt(0)")
def count_stamp(i, reg):
    if ST: a(f"s_sub_u32 s{64+2*(i%16)}, {SPIN}, {reg}\ns_mul_i32 s{64+2*(i%16)}, s{64+2*(i%16)}, 100\ns_add_u32 s{64+2*(i%16)}, s{64+2*(i%16)}, s62")
def flush_stamps(idx, cond=None, lbl=None, base=0):
    if not ST: return
    a("s_mov_b64 exec, -1")
    if cond is not None:
        a(f"s_cmp_lg_u32 s3, {cond}\ns_cbranch_scc1 {lbl}")
    a("s_waitcnt vmcnt(0)")
    stamp(idx[-1])
    a("s_waitcnt lgkmcnt(0)")
    m = 0
    for i in idx:
        a(f"v_writelane_b32 v1, s{64+2*(i%16)}, {i}")
        m |= 1 << i
    a(f"v_lshlrev_b32 v2, 2, v0\ns_lshl_b32 s63, s2, 8\ns_add_u32 s63, s63, {STOFF}")
    a(f"s_mov_b32 exec_lo, {hex(m & 0xffffffff)}\ns_mov_b32 exec_hi, {hex(m >> 32)}")
    a(f"buffer_store_dword v1, v2, s[28:31], s63 offen")
    if lbl is not None: a(f"{lbl}:")

def kwait(e=True):
    a("s_waitcnt lgkmcnt(0)")
    if ST: a("s_mov_b32 s62, s96")
    if e: a("s_load_dwordx2 s[20:21], s[18:19], 0")
def nplus():
    a("s_add_u32 s20, s20, 1\ns_addc_u32 s21, s21, 0")
def ffn_ids():
    a(f"""
s_sub_u32 s44, s2, {NH}
s_and_b32 s22, s44, 7
s_lshr_b32 s44, s44, 3
s_lshl_b32 s23, s22, 1
s_mul_i32 s22, s22, 18
s_add_u32 s22, s22, s44
s_cmp_ge_u32 s44, 9
s_cselect_b32 s45, 9, 0
s_addc_u32 s23, s23, 0
s_sub_u32 s61, s44, s45
""")

if ST: a("s_memrealtime s[96:97]")
stamp(0)
a(f"""
s_cmp_ge_u32 s2, 256
s_cbranch_scc1 END
s_load_dwordx16 s[4:19], s[0:1], 0
v_lshrrev_b32 v1, 6, v0
v_and_b32 v0, 63, v0
v_readfirstlane_b32 s3, v1
s_nop 0
s_cmp_eq_u32 s3, 5
s_cbranch_scc0 NOTROUTER
""")
a(f"""
v_lshrrev_b32 v1, 3, v0
v_and_b32 v2, 7, v0
v_lshlrev_b32 v2, 4, v2
v_mul_u32_u24 v3, 1152, v1
v_add_u32 v3, v3, v2
s_mul_i32 s50, s2, 9216
""")
ffn_ids()
a(f"""
v_mov_b32 v4, -1
v_mov_b32 v5, -1
v_mov_b32 v6, -1
v_mov_b32 v7, -1
v_lshlrev_b32 v80, 11, v1
v_add_u32 v80, v80, v2           ; (l>>3)*2048 + (l&7)*16
s_lshl_b32 s52, s61, 15
s_lshl_b32 s45, s23, 7
s_add_u32 s52, s52, s45
s_add_u32 s52, s52, {PART}
v_lshrrev_b32 v81, 5, v0
v_mul_u32_u24 v81, {HB1-HB0-512}, v81
v_lshl_add_u32 v81, v0, 4, v81
s_lshl_b32 s54, s22, 9
s_add_u32 s54, s54, {HB0}
s_cmp_lt_u32 s2, {NH}
s_cselect_b32 s52, 0x7000000, s52
s_cselect_b32 s54, 0x7000000, s54
s_add_u32 s53, s52, 16384
""")
kwait()
stamp(33)
a.srd(24, 4, XB); a.srd(32, 6, 1152)
for i in range(9):
    a(f"buffer_load_dwordx4 v[{8+4*i}:{11+4*i}], v3, s[24:27], s50 offen offset:{128*i}")
for i in range(9):
    a(f"buffer_load_dwordx4 v[{44+4*i}:{47+4*i}], v2, s[32:35], 0 offen offset:{128*i}")
a.srd(28, 18, WS_USED)
a(f"""
buffer_store_dwordx4 v[4:7], v80, s[28:31], s52 offen sc1
buffer_store_dwordx4 v[4:7], v80, s[28:31], s53 offen sc1
buffer_store_dwordx4 v[4:7], v81, s[28:31], s54 offen sc1
s_barrier
""")
a.srd(36, 14, XB)
a(f"""
s_lshl_b32 s44, s2, 3
v_add_u32 v85, s44, v1
v_and_b32 v86, 3, v1            ; k
v_mul_u32_u24 v87, 5, v86
v_cmp_ne_u32 vcc, 0, v86
v_sub_u32 v88, 2047, v85
v_lshlrev_b32 v88, 5, v88
v_lshlrev_b32 v85, 2, v85
s_lshl_b32 s47, s2, 2
s_add_u32 s47, s47, {DONE}
v_mov_b32 v90, 0
v_mov_b32 v91, 0
v_mov_b32 v92, 0
v_mov_b32 v93, 0
s_waitcnt lgkmcnt(0)
""")
nplus()
a(f"""
v_mov_b32 v86, s20
v_lshrrev_b32 v87, v87, v86
v_cndmask_b32 v89, 0, v86, vcc
v_add_u32 v89, v89, v87
v_and_or_b32 v88, v89, 31, v88
s_mov_b32 s46, {KEYS}
v_mov_b32 v82, 0x207
""")
for i in range(9):
    a(f"s_waitcnt vmcnt({8-i+3})")
    for k in range(4):
        a(f"v_dot2c_f32_bf16 v{90+k}, v{8+4*i+k}, v{44+4*i+k}")
stamp(34)
a.nop(3)
a(f"""
v_add_f32 v4, v90, v91
v_add_f32 v6, v92, v93
v_add_f32 v4, v4, v6
s_nop 1
v_add_f32_dpp v4, v4, v4 quad_perm:[1,0,3,2] row_mask:0xf bank_mask:0xf
s_nop 1
v_add_f32_dpp v4, v4, v4 quad_perm:[2,3,0,1] row_mask:0xf bank_mask:0xf
s_nop 1
v_add_f32_dpp v4, v4, v4 row_half_mirror row_mask:0xf bank_mask:0xf
v_cvt_pk_bf16_f32 v5, v4, v4
v_cmp_o_f32 vcc, v4, v4
v_ashrrev_i32 v6, 31, v5
v_or_b32 v6, 0x80000000, v6
v_xor_b32 v6, v6, v5
v_cndmask_b32 v6, 0, v6, vcc
v_and_b32 v6, 0xffff0000, v6
v_or_b32 v6, v6, v88
s_mov_b32 exec_lo, 0x01010101
s_mov_b32 exec_hi, 0x01010101
s_waitcnt vmcnt(0)
buffer_store_dword v6, v85, s[28:31], s46 offen sc1
s_mov_b64 exec, -1
s_barrier
""")
stamp(35)
a("""
v_cmp_class_f32 vcc, v4, v82
s_cbranch_vccnz R_SLOW
R_COPY:
s_barrier
""")
a(f"""
s_cmp_lt_u32 s2, {NH}
s_cbranch_scc1 R_GO
v_mov_b32 v80, {FLG+4}
s_barrier
ds_read_b32 v80, v80
s_barrier
s_barrier
s_waitcnt lgkmcnt(0)
v_cmp_lt_u32 vcc, v6, v80
s_and_b64 exec, exec, vcc
s_cbranch_execz R_END
R_GO:
""")
stamp(36)
for i in range(9):
    a(f"buffer_store_dwordx4 v[{8+4*i}:{11+4*i}], v3, s[36:39], s50 offen offset:{128*i} {COPYFL}")
a(f"""
s_cmp_lt_u32 s2, {NH}
s_cbranch_scc0 R_END
v_mov_b32 v5, 0
s_mov_b64 exec, 1
s_waitcnt vmcnt(0)
buffer_store_dword v86, v5, s[28:31], s47 offen sc1
R_END:
""")
stamp(37)
flush_stamps([33,34,35,36,37,38])
a("""s_endpgm
R_SLOW:
s_mov_b32 s44, 0x7f807f80
s_mov_b32 s45, 0x00400040
""")
for i in range(36):
    r = 8+i
    a(f"v_and_b32 v80, s44, v{r}\nv_add_u32 v80, 0x00800080, v80\nv_lshrrev_b32 v80, 9, v80\nv_and_or_b32 v{r}, v80, s45, v{r}")
a("s_branch R_COPY")

a(f"""
NOTROUTER:
s_cmp_ge_u32 s2, {NH}
s_cbranch_scc1 FFN
s_cmp_lg_u32 s3, 4
s_cbranch_scc1 END
""")
R0 = 32*OWN
NGU = (576-R0)*9
nb_gu = -(-NGU // (14*64))
NDN = 18*288
nb_dn = -(-NDN // (14*64))
a(f"""
s_lshr_b32 s44, s2, 3
s_lshl_b32 s44, s44, 6
s_and_b32 s45, s2, 7
s_mul_i32 s46, s45, {18*36864}
s_mul_i32 s45, s45, 1152
s_add_u32 s45, s45, {R0*9216}
v_add_u32 v2, s44, v0
""")
for blk in range(nb_gu):
    a(f"""
v_add_u32 v4, {blk*14*64}, v2
v_mul_u32_u24 v5, 7282, v4
v_lshrrev_b32 v5, 16, v5
v_mul_u32_u24 v6, 9, v5
v_sub_u32 v4, v4, v6
v_mul_u32_u24 v5, 9216, v5
v_lshl_add_u32 v4, v4, 7, v5
v_add_u32 v{8+blk}, s45, v4
""")
for blk in range(nb_dn):
    a(f"v_add_u32 v4, {blk*14*64}, v2\nv_lshlrev_b32 v{16+blk}, 7, v4")
if NDN % (14*64):
    a(f"v_cmp_gt_u32 vcc, {NDN}, v4\nv_mov_b32 v5, 0x7000000\ns_nop 0\nv_cndmask_b32 v{16+nb_dn-1}, v5, v{16+nb_dn-1}, vcc")
kwait(XD)
a.srd(32, 8, WB); a.srd(36, 10, WB); a.srd(40, 12, WB)
if ST: a.srd(28, 18, WS_USED)
pfl = []
for blk in range(nb_gu):
    pfl += [f"buffer_load_dword v24, v{8+blk}, s[32:35], 0 offen", f"buffer_load_dword v24, v{8+blk}, s[36:39], 0 offen"]
for blk in range(nb_dn):
    pfl.append(f"buffer_load_dword v24, v{16+blk}, s[40:43], s46 offen")
a("s_barrier")
if XD: a("s_waitcnt lgkmcnt(0)")
for t in pfl[:PF1]: a(t)
a("s_barrier")
stamp(8)
for t in pfl[PF1:]: a(t)
a(f"s_waitcnt vmcnt({nb_dn})")
stamp(9)
a(f"s_waitcnt vmcnt({CW})\ns_barrier")
stamp(10)
flush_stamps([0,8,9,10,11])
a("s_endpgm")

a(f"""
FFN:
s_cmp_eq_u32 s3, 4
s_cbranch_scc1 SEL
""")
ffn_ids()
a(f"""
v_lshrrev_b32 v2, 2, v0
v_mul_u32_u24 v2, 9216, v2
s_lshl_b32 s44, s22, 6
v_add_u32 v2, s44, v2
v_and_b32 v3, 3, v0
v_lshrrev_b32 v4, 5, v0
v_xor_b32 v3, v3, v4
s_and_b32 s45, s3, 1             ; m
s_lshl_b32 s44, s45, 1
v_xor_b32 v3, s44, v3
v_lshl_add_u32 v3, v3, 4, v2
s_lshr_b32 s46, s3, 1
s_and_b32 s47, s22, 1
s_mul_i32 s47, s47, {OWN}
s_add_u32 s48, s46, s47          ; n own
s_sub_u32 s49, {OWN}, s47
s_add_u32 s49, s49, s46          ; n partner
s_add_u32 s50, s46, {2*OWN}      ; n helper
s_mul_i32 s51, s45, 36864
s_cmp_eq_u32 s45, 0
""")
kwait()
stamp(1)
a("s_cselect_b32 s32, s8, s10\ns_cselect_b32 s33, s9, s11")
a(f"s_and_b32 s33, s33, 0xffff\ns_mov_b32 s34, {WB}\ns_mov_b32 s35, 0x20000")
addr = f"""
v_lshrrev_b32 v5, 3, v0
v_mul_u32_u24 v6, 1152, v5
v_bfe_u32 v5, v5, 1, 1
s_and_b32 s44, s3, 1
s_lshl_b32 s44, s44, 1
v_or_b32 v5, s44, v5             ; sigma
v_lshlrev_b32 v5, 1, v5
v_and_b32 v7, 7, v0
v_xor_b32 v5, v5, v7
v_lshl_add_u32 v5, v5, 4, v6
s_mul_i32 s60, s23, 288*1152
s_lshl_b32 s44, s61, 7
s_add_u32 s60, s60, s44
s_mul_i32 s44, s3, 8*1152
s_add_u32 s60, s60, s44
s_lshl_b32 s53, s3, 10
s_add_u32 s53, s53, {DN}
v_mov_b32 v33, {FLG}
v_lshrrev_b32 v12, 4, v0        ; g
v_bfe_u32 v13, v0, 2, 2         ; r
v_bfe_u32 v14, v0, 1, 1         ; m
v_and_b32 v15, 1, v0            ; ch
v_lshlrev_b32 v16, 3, v12
v_add_u32 v16, v16, v13         ; 8g+r
v_lshlrev_b32 v17, 7, v16
v_lshlrev_b32 v16, 6, v16
v_mul_u32_u24 v18, 36864, v14
v_add_u32 v16, v16, v18
v_and_b32 v18, 1, v12
v_lshl_add_u32 v19, v14, 1, v18 ; 2m + (g&1)
v_xor_b32 v19, s3, v19
v_lshl_add_u32 v16, v19, 4, v16
v_lshl_add_u32 v16, v15, 3, v16
v_lshrrev_b32 v19, 1, v13
v_lshl_add_u32 v19, v18, 1, v19 ; sigma = (r>>1) | (g&1)<<1
v_xor_b32 v19, s3, v19
v_lshl_add_u32 v17, v19, 5, v17
v_and_b32 v19, 3, v0
v_lshl_add_u32 v17, v19, 3, v17
v_add_u32 v17, {DN}, v17
v_and_b32 v19, 7, v0            ; t
v_lshlrev_b32 v18, 2, v18
v_xor_b32 v18, v18, v19         ; t ^ ((g&1)<<2)
v_lshlrev_b32 v18, 4, v18
v_lshl_add_u32 v18, v12, 7, v18
v_add_u32 v18, {XS}, v18
v_lshlrev_b32 v19, 4, v19       ; t*16
v_and_b32 v28, 1, v12
v_lshrrev_b32 v29, 5, v0
v_lshl_add_u32 v28, v28, 1, v29
v_lshl_add_u32 v28, v28, 2, v19
s_lshl_b32 s56, s22, 9
s_lshl_b32 s44, s3, 7
s_add_u32 s56, s56, s44
s_add_u32 s57, s56, {HB1}
s_add_u32 s56, s56, {HB0}
v_lshl_add_u32 v31, v12, 7, v19
v_bfe_u32 v30, v0, 3, 1
v_lshl_add_u32 v30, v30, 9, v31
s_mul_i32 s58, s23, 4608
s_add_u32 s59, s58, {HB1}
s_add_u32 s58, s58, {HB0}
v_lshl_add_u32 v29, v12, 11, v19
s_lshl_b32 s52, s61, 15
s_lshl_b32 s44, s3, 13
s_add_u32 s52, s52, s44
s_lshl_b32 s44, s23, 7
s_add_u32 s52, s52, s44
s_add_u32 s52, s52, {PART}
"""
nissued = [0]
def gu(nreg, cnt):
    if cnt == 0: return
    a(f"s_mul_i32 s54, s{nreg}, 147456\ns_lshl_b32 s55, s{nreg}, 10\ns_add_u32 m0, s55, s51")
    a("s_barrier" if nissued[0] == 0 else "s_nop 0")
    if nissued[0] == 0 and XD:
        a.srd(36, 12, WB); a.srd(28, 18, WS_USED)
        a(addr); a("s_waitcnt lgkmcnt(0)")
    for y in range(cnt):
        a("buffer_load_dwordx4 v3, s[32:35], s54 offen lds")
        nissued[0] += 1
        if nissued[0] == FB:
            if not XD:
                a.srd(36, 12, WB); a.srd(28, 18, WS_USED)
                a(addr); a("s_waitcnt lgkmcnt(0)")
            nplus(); a("v_mov_b32 v34, s20\ns_barrier")
            stamp(2)
        if GATE and nissued[0] == GATE:
            a("ds_write_b32 v33, v34")
        if y != cnt-1:
            a("s_add_u32 m0, m0, 2048\ns_add_u32 s54, s54, 2*147456")
gu(48, OWN//2); gu(49, OWN//2); gu(50, 18-OWN)
stamp(3)
a("s_mov_b32 m0, s53\ns_waitcnt vmcnt(0)")
stamp(4)
a("s_barrier")
stamp(5)
for s in range(18):
    a(f"ds_read_b64_tr_b16 v[{64+4*s}:{65+4*s}], v16 offset:{s*2048}")
    a(f"ds_read_b64_tr_b16 v[{66+4*s}:{67+4*s}], v16 offset:{s*2048+256}")
    if s % 2 == 1:
        a("buffer_load_dwordx4 v5, s[36:39], s60 offen lds")
        if s != 17: a(f"s_add_u32 m0, m0, 4096\ns_add_u32 s60, s60, {32*1152}")
stamp(6)
a("s_waitcnt lgkmcnt(0)\ns_barrier")
stamp(7, True)
for s in range(18):
    a(f"ds_read_b128 v[{172+4*s}:{175+4*s}], v18 offset:{s*512}")
    if s >= 6:
        t = s-6
        a("s_waitcnt lgkmcnt(6)")
        c = "0" if t == 0 else "v[20:23]"
        a(f"v_mfma_f32_16x16x32_bf16 v[20:23], v[{64+4*t}:{67+4*t}], v[{172+4*t}:{175+4*t}], {c}")
for t in range(12, 18):
    a(f"s_waitcnt lgkmcnt({17-t})")
    a(f"v_mfma_f32_16x16x32_bf16 v[20:23], v[{64+4*t}:{67+4*t}], v[{172+4*t}:{175+4*t}], v[20:23]")
stamp(8)
a(f"s_mov_b32 s48, {SPIN}\ns_mov_b32 s49, s58")
a.nop(6)
a("""
v_cvt_pk_bf16_f32 v24, v20, v21
v_cvt_pk_bf16_f32 v25, v22, v23
s_nop 1
v_permlane32_swap_b32 v24, v25
v_lshlrev_b32 v26, 16, v24
v_and_b32 v27, 0xffff0000, v24
v_mul_f32 v20, 0xbfb8aa3b, v26
v_mul_f32 v21, 0xbfb8aa3b, v27
v_exp_f32 v20, v20
v_exp_f32 v21, v21
v_lshlrev_b32 v22, 16, v25
v_add_f32 v20, 1.0, v20
v_add_f32 v21, 1.0, v21
v_rcp_f32 v20, v20
v_rcp_f32 v21, v21
v_and_b32 v23, 0xffff0000, v25
v_mul_f32 v26, v26, v20
v_mul_f32 v27, v27, v21
v_cvt_pk_bf16_f32 v26, v26, v27
v_and_b32 v27, 0xffff0000, v26
v_lshlrev_b32 v26, 16, v26
v_mul_f32 v26, v26, v22
v_mul_f32 v27, v27, v23
v_cvt_pk_bf16_f32 v26, v26, v27
s_mov_b32 exec_lo, 0x00ff00ff
s_mov_b32 exec_hi, 0x00ff00ff
buffer_store_dword v26, v28, s[28:31], s56 offen
s_mov_b64 exec, -1
""")
stamp(9)
a("s_waitcnt vmcnt(1)\ns_barrier")
stamp(10)
HR = 172
def hloads():
    for i in range(4):
        a(f"buffer_load_dwordx4 v[{HR+4*i}:{HR+4*i+3}], v30, s[28:31], s49 offen offset:{1024*i} sc1")
    a(f"s_add_u32 s44, s49, 4096\nbuffer_load_dwordx4 v[{HR+16}:{HR+19}], v31, s[28:31], s44 offen sc1")
hloads()
for c in range(9):
    a(f"ds_read_b64_tr_b16 v[{136+4*c}:{137+4*c}], v17 offset:{c*4096}")
    a(f"ds_read_b64_tr_b16 v[{138+4*c}:{139+4*c}], v17 offset:{c*4096+512}")
a("H_CHK:")
for i in range(5):
    a(f"s_waitcnt vmcnt({4-i})")
    if i == 0: a(f"v_max3_u32 v8, v{HR}, v{HR+1}, v{HR+2}\nv_max_u32 v8, v8, v{HR+3}")
    else: a(f"v_max3_u32 v8, v8, v{HR+4*i}, v{HR+4*i+1}\nv_max3_u32 v8, v8, v{HR+4*i+2}, v{HR+4*i+3}")
a(f"""
v_cmp_eq_u32 vcc, -1, v8
s_waitcnt lgkmcnt(0)
s_cbranch_vccnz H_RETRY
H_OK:
""")
stamp(11)
count_stamp(14, "s48")
for kk in range(9):
    d = "v[64:67]" if kk % 2 == 0 else "v[68:71]"
    c = "0" if kk < 2 else d
    h = HR + 4*(kk//2)
    a(f"v_mfma_f32_16x16x32_bf16 {d}, v[{136+4*kk}:{139+4*kk}], v[{h}:{h+3}], {c}")
a.nop(8)
for k in range(4):
    a(f"v_add_f32_dpp v{64+k}, v{68+k}, v{64+k} row_ror:8 row_mask:0xf bank_mask:0xf")
a("""
s_mov_b32 exec_lo, 0x00ff00ff
s_mov_b32 exec_hi, 0x00ff00ff
buffer_store_dwordx4 v[64:67], v29, s[28:31], s52 offen sc1
buffer_store_dword v26, v28, s[28:31], s57 offen sc1
""")
stamp(12)
if B2MODE == "issue": a("s_barrier")
flush_stamps([0,1,2,3,4,5,6,7,8,9,10,11,12,14,13], 0, "C_NOST")
a(f"""s_endpgm
H_RETRY:
s_sub_u32 s48, s48, 1
s_cbranch_scc1 H_OK
s_cmp_lt_u32 s48, {SPIN-HLOC}
s_cbranch_scc0 H_AGAIN
s_mov_b32 exec_lo, 0x00ff00ff
s_mov_b32 exec_hi, 0x00ff00ff
s_cmp_eq_u32 s48, {SPIN-HLOC-1}
s_cbranch_scc0 H_NOG
buffer_store_dword v26, v28, s[28:31], s57 offen sc1
H_NOG:
s_mov_b64 exec, -1
s_bitcmp1_b32 s48, 0
s_cselect_b32 s49, s58, s59
H_AGAIN:
""")
hloads()
a("s_branch H_CHK")

E0 = 96
D0 = 64
Cb0, Cb1, K1, K0, KA, KB, M1, M0, MA, MB = range(40, 50)
a("SEL:")
stamp(16)
if PRIO: a(f"s_setprio {PRIO}")
a(f"""
v_and_b32 v2, 1, v0
v_bfe_u32 v3, v0, 1, 1
v_bfe_i32 v4, v0, 5, 1
v_bfe_i32 v5, v0, 4, 1
v_add_u32 v{Cb0}, -1, v2
v_add_u32 v{Cb1}, -1, v3
v_xor_b32 v{K1}, v{Cb1}, v4
v_xor_b32 v{K0}, v{Cb0}, v4
v_not_b32 v{KA}, v4
v_mov_b32 v{KB}, v4
v_xor_b32 v{M1}, v{Cb1}, v5
v_xor_b32 v{M0}, v{Cb0}, v5
v_not_b32 v{MA}, v5
v_mov_b32 v{MB}, v5
v_lshlrev_b32 v1, 4, v0
v_lshlrev_b32 v2, 7, v0
v_sub_u32 v2, {2047<<5}, v2
v_lshrrev_b32 v12, 3, v0
v_lshlrev_b32 v12, 4, v12
v_mov_b32 v33, {FLG}
""")
kwait()
a("s_barrier")
a.srd(28, 18, WS_USED); a.srd(24, 4, XB); a.srd(40, 14, XB)
a(f"""
s_mov_b32 s46, {KEYS}
s_mov_b32 s47, {KEYS+4096}
s_mov_b32 s48, {SPIN}
s_mov_b32 s61, {DONE}
s_movk_i32 s58, {NH}
s_sub_u32 s22, s2, {NH}
s_lshl_b32 s60, s22, 11
s_add_u32 s60, s60, {PART}
v_bfe_u32 v5, v0, 4, 1
v_lshrrev_b32 v4, 5, v0
v_lshl_add_u32 v5, v5, 1, v4
s_lshl_b32 s44, s22, 2
v_add_u32 v5, s44, v5
v_lshlrev_b32 v5, 1, v5
s_waitcnt lgkmcnt(0)
""")
nplus()
a("""
s_lshr_b32 s44, s20, 5
s_add_u32 s51, s44, s20
s_lshr_b32 s44, s20, 10
s_add_u32 s52, s44, s20
s_lshr_b32 s44, s20, 15
s_add_u32 s53, s44, s20
s_and_b32 s50, s20, 31
s_and_b32 s51, s51, 31
s_and_b32 s52, s52, 31
s_and_b32 s53, s53, 31
""")
for k in range(1, 4):
    a(f"s_sub_u32 s{50+k}, s{50+k}, {32*k}")
for i in range(8):
    for k in range(4):
        if i == 0: a(f"v_add_u32 v{E0+k}, s{50+k}, v2")
        else: a(f"v_add_u32 v{E0+4*i+k}, {hex((-8192) & 0xffffffff)}, v{E0+4*(i-1)+k}")
a("s_barrier")
stamp(17)
if GATE:
    a(f"""
s_mov_b32 s49, {SPIN}
GATEL:
ds_read_b32 v34, v33
s_sub_u32 s49, s49, 1
s_waitcnt lgkmcnt(0)
v_cmp_eq_u32 vcc, s20, v34
s_cbranch_vccnz GATED
s_cbranch_scc0 GATEL
GATED:
""")
stamp(26)
a("POLL:")
for i in range(8):
    a(f"buffer_load_dwordx4 v[{D0+4*i}:{D0+4*i+3}], v1, s[28:31], s{46+i//4} offen offset:{1024*(i%4)} sc1")
a("v_mov_b32 v6, 0\nv_mov_b32 v7, 0\nv_mov_b32 v8, 0")
for i in range(8):
    a(f"s_waitcnt vmcnt({7-i})")
    d = D0+4*i; e = E0+4*i
    a(f"""
v_med3_u32 v9, v6, v{d}, v{d+1}
v_max3_u32 v6, v6, v{d}, v{d+1}
v_bitop3_b32 v8, v{d}, v{e}, v8 bitop3:0xbe
v_max_u32 v7, v7, v9
v_med3_u32 v9, v6, v{d+2}, v{d+3}
v_max3_u32 v6, v6, v{d+2}, v{d+3}
v_bitop3_b32 v8, v{d+1}, v{e+1}, v8 bitop3:0xbe
v_max_u32 v7, v7, v9
v_bitop3_b32 v8, v{d+2}, v{e+2}, v8 bitop3:0xbe
v_bitop3_b32 v8, v{d+3}, v{e+3}, v8 bitop3:0xbe
""")
a("""
v_and_b32 v8, 0xffff, v8
v_cmp_ne_u32 vcc, 0, v8
s_sub_u32 s48, s48, 1
s_cbranch_vccz POLL_OK
s_cbranch_scc0 POLL
POLL_OK:
""")
stamp(18)
count_stamp(27, "s48")
A, B, P, Q = 6, 7, 9, 10
X1, X2, X3 = "quad_perm:[1,0,3,2]", "quad_perm:[2,3,0,1]", "quad_perm:[3,2,1,0]"
DM = "row_mask:0xf bank_mask:0xf"
def cross(perm, c, swap, last=False):
    sa, sb = (B, A) if swap else (A, B)
    a(f"v_mov_b32_dpp v{P}, v{sa} {perm} {DM}\nv_mov_b32_dpp v{Q}, v{sb} {perm} {DM}")
    a(f"v_med3_u32 v{A}, v{A}, v{P}, v{c}\nv_med3_u32 v{B}, v{B}, v{Q}, v{c}")
    if not last: a("s_nop 0")
def inlane(ca=None, cb=None, pad=2):
    global A, P
    if ca is None:
        a(f"v_max_u32 v{P}, v{A}, v{B}\nv_min_u32 v{B}, v{A}, v{B}")
    else:
        a(f"v_med3_u32 v{P}, v{A}, v{B}, v{ca}\nv_med3_u32 v{B}, v{A}, v{B}, v{cb}")
    A, P = P, A
    a.nop(pad)
def swaplevel(op):
    a(f"v_mov_b32 v{P}, v{A}\nv_mov_b32 v{Q}, v{B}\ns_nop 0\n{op} v{A}, v{P}\n{op} v{B}, v{Q}")
    a(f"v_max_u32 v{A}, v{A}, v{P}\nv_max_u32 v{B}, v{B}, v{Q}\ns_nop 0")
cross(X1, Cb0, True, True); inlane()
cross(X3, K1, True); cross(X1, K0, False, True); inlane(KA, KB, 0)
swaplevel("v_permlane32_swap_b32")
cross(X2, M1, False); cross(X1, M0, False, True); inlane(MA, MB, 0)
swaplevel("v_permlane16_swap_b32")
cross(X2, Cb1, False); cross(X1, Cb0, False, True); inlane()
a(f"v_max_u32_dpp v{P}, v{B}, v{A} row_mirror {DM}\nv_max_u32_dpp v{B}, v{A}, v{B} row_mirror {DM}\ns_nop 0")
A, P = P, A
cross(X2, Cb1, False); cross(X1, Cb0, False, True); inlane()
a(f"v_max_u32_dpp v6, v{B}, v{A} row_half_mirror {DM}")
A = 6
stamp(19)
a(f"""
v_bfe_u32 v15, v{A}, 5, 11
v_sub_u32 v15, 2047, v15
s_mov_b32 m0, {XS}
v_mul_u32_u24 v11, 1152, v15
s_mov_b32 s44, 0
v_add_u32 v13, v11, v12
""")
for i in range(9):
    a("buffer_load_dwordx4 v13, s[24:27], s44 offen lds")
    if i != 8: a("s_add_u32 m0, m0, 1024\ns_add_u32 s44, s44, 128")
a(f"""
s_barrier
v_min_u32_dpp v9, v{A}, v{A} {X1} {DM}
s_nop 1
v_min_u32_dpp v9, v9, v9 {X2} {DM}
s_nop 1
v_min_u32_dpp v9, v9, v9 row_half_mirror {DM}
v_mov_b32 v10, 0
""")
for q in range(0, 32, 2):
    a(f"v_cmp_ge_u32 vcc, v{D0+q}, v9\nv_cmp_ge_u32 s[44:45], v{D0+q+1}, v9\ns_nop 0\nv_addc_co_u32 v10, vcc, 0, v10, vcc\nv_addc_co_u32 v10, s[44:45], 0, v10, s[44:45]")
a("""
v_cmp_lt_u32 vcc, 2, v10
s_cbranch_vccnz FALLBACK
SEL_DONE:
ds_write_b32 v33, v9 offset:4
s_waitcnt vmcnt(0) lgkmcnt(0)
""")
stamp(20)
a(f"""
s_barrier
v_add_u32 v5, v5, v11
buffer_load_ushort v4, v5, s[24:27], 0 offen
v_lshrrev_b32 v15, 3, v15
v_cmp_gt_u32 s[56:57], s58, v15
v_lshlrev_b32 v15, 2, v15
v_and_b32 v3, 0xffff0000, v{A}
v_ashrrev_i32 v8, 31, v3
v_not_b32 v8, v8
v_or_b32 v8, 0x80000000, v8
v_xor_b32 v3, v3, v8
v_and_b32 v3, 0xffff0000, v3
v_mul_f32 v3, 0xbfb8aa3b, v3
v_exp_f32 v3, v3
s_mov_b32 s48, {SPIN}
v_add_f32 v3, 1.0, v3
v_rcp_f32 v3, v3
s_nop 0
v_cvt_pk_bf16_f32 v3, v3, v3
v_and_b32 v3, 0xffff0000, v3
s_barrier
s_barrier
""")
stamp(22)
a("""
buffer_load_dword v13, v15, s[28:31], s61 offen sc1
G_POLL:
buffer_load_dwordx4 v[16:19], v1, s[28:31], s60 offen sc1
buffer_load_dwordx4 v[20:23], v1, s[28:31], s60 offen offset:1024 sc1
s_sub_u32 s48, s48, 1
s_waitcnt vmcnt(1)
v_max3_u32 v8, v16, v17, v18
v_max_u32 v8, v8, v19
s_waitcnt vmcnt(0)
v_max3_u32 v8, v8, v20, v21
v_max3_u32 v8, v8, v22, v23
v_add_f32 v16, v16, v20
v_cmp_eq_u32 vcc, -1, v8
v_add_f32 v17, v17, v21
v_add_f32 v18, v18, v22
v_add_f32 v19, v19, v23
s_cbranch_vccz G_OK
s_cbranch_scc0 G_POLL
G_OK:
""")
stamp(23)
count_stamp(28, "s48")
a(f"""
v_cmp_ne_u32 vcc, s20, v13
v_permlane32_swap_b32 v16, v17
v_permlane32_swap_b32 v18, v19
v_add_f32 v16, v16, v17
v_add_f32 v18, v18, v19
s_and_b64 vcc, vcc, s[56:57]
v_lshlrev_b32 v4, 16, v4
s_cbranch_scc1 DONEL
DONE_OK:
v_permlane16_swap_b32 v16, v18
v_add_f32 v16, v16, v18
s_nop 1
v_add_f32_dpp v8, v16, v16 row_ror:8 row_mask:0xf bank_mask:0xf
v_cvt_pk_bf16_f32 v8, v8, v8
v_and_b32 v8, 0xffff0000, v8
v_mul_f32 v8, v8, v3
v_cvt_pk_bf16_f32 v8, v8, v8
v_and_b32 v8, 0xffff0000, v8
v_fma_f32 v8, v4, 0, v8
v_add_f32 v8, v4, v8
v_cvt_pk_bf16_f32 v8, v8, v8
s_mov_b32 exec_lo, 0x00ff00ff
s_mov_b32 exec_hi, 0x00ff00ff
buffer_store_short v8, v5, s[40:43], 0 offen {FINFL}
s_cmp_lg_u32 s2, {NH}
s_cbranch_scc1 F_NOE
s_mov_b64 exec, 1
v_mov_b32 v8, s20
v_mov_b32 v9, s21
v_mov_b32 v10, 0
buffer_store_dwordx2 v[8:9], v10, s[28:31], 0 offen sc1
F_NOE:
""")
stamp(24)
flush_stamps([16,17,18,19,20,22,23,24,26,27,28,25])
a(f"""END:
s_endpgm
DONEL:
s_mov_b32 s48, {SPIN}
DONEL2:
buffer_load_dword v13, v15, s[28:31], s61 offen sc1
s_waitcnt vmcnt(0)
v_cmp_ne_u32 vcc, s20, v13
s_and_b64 vcc, vcc, s[56:57]
s_cbranch_scc0 DONE_OK
s_sub_u32 s48, s48, 1
s_cbranch_scc0 DONEL2
s_branch DONE_OK
FALLBACK:
s_mov_b32 s44, 0
s_mov_b32 s49, 0
v_bfe_u32 v14, v0, 3, 1
v_lshlrev_b32 v14, 2, v14
v_xor_b32 v14, v14, v0
v_and_b32 v14, 7, v14
FB_LOOP:
""")
for q in range(0, 32, 2):
    a(f"v_subrev_u32 v8, s44, v{D0+q}\nv_subrev_u32 v9, s44, v{D0+q+1}")
    a("v_max_u32 v7, v8, v9" if q == 0 else "v_max3_u32 v7, v7, v8, v9")
for dpp in ["row_shr:1 row_mask:0xf", "row_shr:2 row_mask:0xf", "row_shr:4 row_mask:0xf", "row_shr:8 row_mask:0xf", "row_bcast:15 row_mask:0xa", "row_bcast:31 row_mask:0xc"]:
    a(f"s_nop 1\nv_max_u32_dpp v7, v7, v7 {dpp} bank_mask:0xf")
a(f"""
s_nop 1
v_readlane_b32 s45, v7, 63
v_cmp_eq_u32 vcc, s49, v14
s_nop 3
s_add_u32 s44, s44, s45
v_mov_b32 v8, s44
v_cndmask_b32 v{A}, v{A}, v8, vcc
s_add_u32 s49, s49, 1
s_cmp_lt_u32 s49, 8
s_cbranch_scc1 FB_LOOP
v_mov_b32 v9, s44
v_bfe_u32 v15, v{A}, 5, 11
v_sub_u32 v15, 2047, v15
v_mul_u32_u24 v11, 1152, v15
v_add_u32 v13, v11, v12
s_mov_b32 m0, {XS}
s_mov_b32 s44, 0
FB_X:
buffer_load_dwordx4 v13, s[24:27], s44 offen lds
s_add_u32 m0, m0, 1024
s_add_u32 s44, s44, 128
s_cmp_lt_u32 s44, 1152
s_cbranch_scc1 FB_X
s_branch SEL_DONE
""")
a('.section .rodata,"a"\n.p2align 6')
a.lines.append(kernel_desc(K, 244, 100))
open(sys.argv[1] if len(sys.argv) > 1 else "v4.s", "w").write(a.text())
```

```python
import sys, re
from asmlib import kernel_desc
inp, outp, nwg, stride, A, B, mode, scale = sys.argv[1:9]
off = int(sys.argv[9], 0) if len(sys.argv) > 9 else 0x380000
nwg, stride, A, B, scale = int(nwg), int(stride), int(A), int(B), int(scale)
s = open(inp).read()
lines = s.split('\n')
idx = [i for i,l in enumerate(lines) if l.startswith('; @launch')]
for i in idx:
    if 'kernel=' not in lines[i]:
        lines[i] = lines[i].replace('@launch ', '@launch kernel=standalone__moe_arch_mod__prompt_kernel ')
lines[idx[-1]+1:idx[-1]+1] = ["; @launch kernel=e_kernel grid=(1,1,1) block=(64,1,1) lds=0"]
t = '\n'.join(lines)
op = "v_max_u32" if mode.endswith("max") else "v_min_u32"
diff = mode.startswith("d")
body = f"""
    s_load_dwordx2 s[4:5], s[0:1], 56
    s_cmp_lg_u32 s2, 0
    s_cbranch_scc1 E_END
    s_waitcnt lgkmcnt(0)
    s_add_u32 s4, s4, {off}
    s_addc_u32 s5, s5, 0
    s_load_dword s8, s[4:5], {4*A}
"""
for k in range(4):
    body += f"""
    v_add_u32 v1, {64*k}, v0
    v_min_u32 v1, {nwg-1}, v1
    v_mul_u32_u24 v1, {stride}, v1
    global_load_dword v{8+k}, v1, s[4:5] offset:{4*A}
    global_load_dword v{12+k}, v1, s[4:5] offset:{4*B}
"""
body += """
    s_waitcnt vmcnt(0) lgkmcnt(0)
    s_sub_u32 s8, s8, 100000
"""
for k in range(8):
    body += f"    v_subrev_u32 v{8+k}, s8, v{8+k}\n"
if diff:
    for k in range(4):
        body += f"    v_sub_u32 v{12+k}, v{12+k}, v{8+k}\n    v_mov_b32 v{8+k}, 0\n"
body += f"""
    v_min_u32 v8, v8, v9
    v_min_u32 v10, v10, v11
    v_min_u32 v8, v8, v10
    {op} v12, v12, v13
    {op} v14, v14, v15
    {op} v12, v12, v14
"""
for dpp in ["row_shr:1 row_mask:0xf", "row_shr:2 row_mask:0xf", "row_shr:4 row_mask:0xf", "row_shr:8 row_mask:0xf", "row_bcast:15 row_mask:0xa", "row_bcast:31 row_mask:0xc"]:
    body += f"    s_nop 1\n    v_min_u32_dpp v8, v8, v8 {dpp} bank_mask:0xf\n    {op}_dpp v12, v12, v12 {dpp} bank_mask:0xf\n"
body += f"""
    s_nop 1
    v_readlane_b32 s10, v8, 63
    v_readlane_b32 s11, v12, 63
    s_nop 3
    s_sub_u32 s16, s11, s10
    s_mul_i32 s16, s16, {scale}
    s_min_u32 s16, s16, 20000
    s_memrealtime s[18:19]
    s_waitcnt lgkmcnt(0)
E_LOOP:
    s_memrealtime s[20:21]
    s_waitcnt lgkmcnt(0)
    s_sub_u32 s22, s20, s18
    s_cmp_lt_u32 s22, s16
    s_cbranch_scc1 E_LOOP
E_END:
    s_endpgm
"""
t = t.replace('.section .rodata,"a"', '.globl e_kernel\n.p2align 8\n.type e_kernel,@function\ne_kernel:\n' + body + '\n.section .rodata,"a"')
t += ".p2align 6\n" + kernel_desc("e_kernel", 16, 32)
open(outp, 'w').write(t)
```

```python
import sys, os
from asmlib import *

XB = 2048*1152
WB = 576*4608*2
WS_USED = 0x400000
KEYS = 0x1000
DONE = 0x4000
HB0 = 0x10000
HB1 = 0x30000
PART = 0x50000
STOFF = 0x380000
GU, DN, XS, FLG = 0, 73728, 110592, 119808
LDS = 119936
NH = 112
env = lambda k, d: os.environ.get(k, d)
ST = int(env("ST", "0"))
OWN = int(env("OWN", "6"))
FB = int(env("FB", "3"))
PF1 = int(env("PF1", "3"))
GATE = int(env("GATE", "8"))
PRIO = int(env("PRIO", "3"))
CW = int(env("CW", "2"))
B2MODE = "issue"
XD = int(env("XD", "1"))
COPYFL = env("COPYFL", "sc1")
FINFL = env("FINFL", "sc1")
HLOC = int(env("HLOC", "10"))
SPIN = 20000
K = "standalone__moe_arch_mod__prompt_kernel"

a = Asm()
a.lines.append(HEADER + f"; @launch grid=(256,1,1) block=(384,1,1) lds={LDS}\n"
  '.amdgcn_target "amdgcn-amd-amdhsa--gfx950"\n.text')
a(f".globl {K}\n.p2align 8\n.type {K},@function\n{K}:")

def stamp(i, wait=False):
    if ST:
        a(f"s_memrealtime s[{64+2*(i%16)}:{65+2*(i%16)}]")
        if wait: a("s_waitcnt lgkmcnt(0)")
def count_stamp(i, reg):
    if ST: a(f"s_sub_u32 s{64+2*(i%16)}, {SPIN}, {reg}\ns_mul_i32 s{64+2*(i%16)}, s{64+2*(i%16)}, 100\ns_add_u32 s{64+2*(i%16)}, s{64+2*(i%16)}, s62")
def flush_stamps(idx, cond=None, lbl=None, base=0):
    if not ST: return
    a("s_mov_b64 exec, -1")
    if cond is not None:
        a(f"s_cmp_lg_u32 s3, {cond}\ns_cbranch_scc1 {lbl}")
    a("s_waitcnt vmcnt(0)")
    stamp(idx[-1])
    a("s_waitcnt lgkmcnt(0)")
    m = 0
    for i in idx:
        a(f"v_writelane_b32 v1, s{64+2*(i%16)}, {i}")
        m |= 1 << i
    a(f"v_lshlrev_b32 v2, 2, v0\ns_lshl_b32 s63, s2, 8\ns_add_u32 s63, s63, {STOFF}")
    a(f"s_mov_b32 exec_lo, {hex(m & 0xffffffff)}\ns_mov_b32 exec_hi, {hex(m >> 32)}")
    a(f"buffer_store_dword v1, v2, s[28:31], s63 offen")
    if lbl is not None: a(f"{lbl}:")

def kwait(e=True):
    a("s_waitcnt lgkmcnt(0)")
    if ST: a("s_mov_b32 s62, s96")
    if e: a("s_load_dwordx2 s[20:21], s[18:19], 0")
def nplus():
    a("s_add_u32 s20, s20, 1\ns_addc_u32 s21, s21, 0")
def ffn_ids():
    a(f"""
s_sub_u32 s44, s2, {NH}
s_and_b32 s22, s44, 7
s_lshr_b32 s44, s44, 3
s_lshl_b32 s23, s22, 1
s_mul_i32 s22, s22, 18
s_add_u32 s22, s22, s44
s_cmp_ge_u32 s44, 9
s_cselect_b32 s45, 9, 0
s_addc_u32 s23, s23, 0
s_sub_u32 s61, s44, s45
""")

if ST: a("s_memrealtime s[96:97]")
stamp(0)
a(f"""
s_cmp_ge_u32 s2, 256
s_cbranch_scc1 END
s_load_dwordx16 s[4:19], s[0:1], 0
""")
if int(env("CPF", "1")):
    a(f"""
s_getpc_b64 s[22:23]
CPC:
v_lshlrev_b32 v1, 7, v0
v_min_u32 v1, CODE_END-CPC-4, v1
global_load_dword v244, v1, s[22:23]
""")
a(f"""
v_lshrrev_b32 v1, 6, v0
v_and_b32 v0, 63, v0
v_readfirstlane_b32 s3, v1
s_nop 0
s_cmp_eq_u32 s3, 5
s_cbranch_scc0 NOTROUTER
""")
a(f"""
v_lshrrev_b32 v1, 3, v0
v_and_b32 v2, 7, v0
v_lshlrev_b32 v2, 4, v2
v_mul_u32_u24 v3, 1152, v1
v_add_u32 v3, v3, v2
s_mul_i32 s50, s2, 9216
""")
ffn_ids()
a(f"""
v_mov_b32 v4, -1
v_mov_b32 v5, -1
v_mov_b32 v6, -1
v_mov_b32 v7, -1
v_lshlrev_b32 v80, 11, v1
v_add_u32 v80, v80, v2           ; (l>>3)*2048 + (l&7)*16
s_lshl_b32 s52, s61, 15
s_lshl_b32 s45, s23, 7
s_add_u32 s52, s52, s45
s_add_u32 s52, s52, {PART}
v_lshrrev_b32 v81, 5, v0
v_mul_u32_u24 v81, {HB1-HB0-512}, v81
v_lshl_add_u32 v81, v0, 4, v81
s_lshl_b32 s54, s22, 9
s_add_u32 s54, s54, {HB0}
s_cmp_lt_u32 s2, {NH}
s_cselect_b32 s52, 0x7000000, s52
s_cselect_b32 s54, 0x7000000, s54
s_add_u32 s53, s52, 16384
""")
kwait()
stamp(33)
a.srd(24, 4, XB); a.srd(32, 6, 1152)
for i in range(9):
    a(f"buffer_load_dwordx4 v[{8+4*i}:{11+4*i}], v3, s[24:27], s50 offen offset:{128*i}")
for i in range(9):
    a(f"buffer_load_dwordx4 v[{44+4*i}:{47+4*i}], v2, s[32:35], 0 offen offset:{128*i}")
a.srd(28, 18, WS_USED)
a(f"""
buffer_store_dwordx4 v[4:7], v80, s[28:31], s52 offen sc1
buffer_store_dwordx4 v[4:7], v80, s[28:31], s53 offen sc1
buffer_store_dwordx4 v[4:7], v81, s[28:31], s54 offen sc1
s_barrier
""")
a.srd(36, 14, XB)
a(f"""
s_lshl_b32 s44, s2, 3
v_add_u32 v85, s44, v1
v_and_b32 v86, 3, v1            ; k
v_mul_u32_u24 v87, 5, v86
v_cmp_ne_u32 vcc, 0, v86
v_sub_u32 v88, 2047, v85
v_lshlrev_b32 v88, 5, v88
v_lshlrev_b32 v85, 2, v85
s_lshl_b32 s47, s2, 2
s_add_u32 s47, s47, {DONE}
v_mov_b32 v90, 0
v_mov_b32 v91, 0
v_mov_b32 v92, 0
v_mov_b32 v93, 0
s_waitcnt lgkmcnt(0)
""")
nplus()
a(f"""
v_mov_b32 v86, s20
v_lshrrev_b32 v87, v87, v86
v_cndmask_b32 v89, 0, v86, vcc
v_add_u32 v89, v89, v87
v_and_or_b32 v88, v89, 31, v88
s_mov_b32 s46, {KEYS}
v_mov_b32 v82, 0x207
""")
for i in range(9):
    a(f"s_waitcnt vmcnt({8-i+3})")
    for k in range(4):
        a(f"v_dot2c_f32_bf16 v{90+k}, v{8+4*i+k}, v{44+4*i+k}")
stamp(34)
a.nop(3)
a(f"""
v_add_f32 v4, v90, v91
v_add_f32 v6, v92, v93
v_add_f32 v4, v4, v6
s_nop 1
v_add_f32_dpp v4, v4, v4 quad_perm:[1,0,3,2] row_mask:0xf bank_mask:0xf
s_nop 1
v_add_f32_dpp v4, v4, v4 quad_perm:[2,3,0,1] row_mask:0xf bank_mask:0xf
s_nop 1
v_add_f32_dpp v4, v4, v4 row_half_mirror row_mask:0xf bank_mask:0xf
v_cvt_pk_bf16_f32 v5, v4, v4
v_cmp_o_f32 vcc, v4, v4
v_ashrrev_i32 v6, 31, v5
v_or_b32 v6, 0x80000000, v6
v_xor_b32 v6, v6, v5
v_cndmask_b32 v6, 0, v6, vcc
v_and_b32 v6, 0xffff0000, v6
v_or_b32 v6, v6, v88
s_mov_b32 exec_lo, 0x01010101
s_mov_b32 exec_hi, 0x01010101
s_waitcnt vmcnt(0)
buffer_store_dword v6, v85, s[28:31], s46 offen sc1
s_mov_b64 exec, -1
s_barrier
""")
stamp(35)
a("""
v_cmp_class_f32 vcc, v4, v82
s_cbranch_vccnz R_SLOW
R_COPY:
s_barrier
""")
a(f"""
s_cmp_lt_u32 s2, {NH}
s_cbranch_scc1 R_GO
v_mov_b32 v80, {FLG+4}
s_barrier
ds_read_b32 v80, v80
s_barrier
s_barrier
s_waitcnt lgkmcnt(0)
v_cmp_lt_u32 vcc, v6, v80
s_and_b64 exec, exec, vcc
s_cbranch_execz R_END
R_GO:
""")
stamp(36)
for i in range(9):
    a(f"buffer_store_dwordx4 v[{8+4*i}:{11+4*i}], v3, s[36:39], s50 offen offset:{128*i} {COPYFL}")
a(f"""
s_cmp_lt_u32 s2, {NH}
s_cbranch_scc0 R_END
v_mov_b32 v5, 0
s_mov_b64 exec, 1
s_waitcnt vmcnt(0)
buffer_store_dword v86, v5, s[28:31], s47 offen sc1
R_END:
""")
stamp(37)
flush_stamps([33,34,35,36,37,38])
a("""s_endpgm
R_SLOW:
s_mov_b32 s44, 0x7f807f80
s_mov_b32 s45, 0x00400040
""")
for i in range(36):
    r = 8+i
    a(f"v_and_b32 v80, s44, v{r}\nv_add_u32 v80, 0x00800080, v80\nv_lshrrev_b32 v80, 9, v80\nv_and_or_b32 v{r}, v80, s45, v{r}")
a("s_branch R_COPY")

a(f"""
NOTROUTER:
s_cmp_ge_u32 s2, {NH}
s_cbranch_scc1 FFN
s_cmp_lg_u32 s3, 4
s_cbranch_scc1 END
""")
R0 = 32*OWN
NGU = (576-R0)*9
nb_gu = -(-NGU // (14*64))
NDN = 18*288
nb_dn = -(-NDN // (14*64))
a(f"""
s_lshr_b32 s44, s2, 3
s_lshl_b32 s44, s44, 6
s_and_b32 s45, s2, 7
s_mul_i32 s46, s45, {18*36864}
s_mul_i32 s45, s45, 1152
s_add_u32 s45, s45, {R0*9216}
v_add_u32 v2, s44, v0
""")
for blk in range(nb_gu):
    a(f"""
v_add_u32 v4, {blk*14*64}, v2
v_mul_u32_u24 v5, 7282, v4
v_lshrrev_b32 v5, 16, v5
v_mul_u32_u24 v6, 9, v5
v_sub_u32 v4, v4, v6
v_mul_u32_u24 v5, 9216, v5
v_lshl_add_u32 v4, v4, 7, v5
v_add_u32 v{8+blk}, s45, v4
""")
for blk in range(nb_dn):
    a(f"v_add_u32 v4, {blk*14*64}, v2\nv_lshlrev_b32 v{16+blk}, 7, v4")
if NDN % (14*64):
    a(f"v_cmp_gt_u32 vcc, {NDN}, v4\nv_mov_b32 v5, 0x7000000\ns_nop 0\nv_cndmask_b32 v{16+nb_dn-1}, v5, v{16+nb_dn-1}, vcc")
kwait(XD)
a.srd(32, 8, WB); a.srd(36, 10, WB); a.srd(40, 12, WB)
if ST: a.srd(28, 18, WS_USED)
pfl = []
for blk in range(nb_gu):
    pfl += [f"buffer_load_dword v24, v{8+blk}, s[32:35], 0 offen", f"buffer_load_dword v24, v{8+blk}, s[36:39], 0 offen"]
for blk in range(nb_dn):
    pfl.append(f"buffer_load_dword v24, v{16+blk}, s[40:43], s46 offen")
a("s_barrier")
if XD: a("s_waitcnt lgkmcnt(0)")
for t in pfl[:PF1]: a(t)
a("s_barrier")
stamp(8)
for t in pfl[PF1:]: a(t)
a(f"s_waitcnt vmcnt({nb_dn})")
stamp(9)
a(f"s_waitcnt vmcnt({CW})\ns_barrier")
stamp(10)
flush_stamps([0,8,9,10,11])
a("s_endpgm")

a(f"""
FFN:
s_cmp_eq_u32 s3, 4
s_cbranch_scc1 SEL
""")
ffn_ids()
a(f"""
v_lshrrev_b32 v2, 2, v0
v_mul_u32_u24 v2, 9216, v2
s_lshl_b32 s44, s22, 6
v_add_u32 v2, s44, v2
v_and_b32 v3, 3, v0
v_lshrrev_b32 v4, 5, v0
v_xor_b32 v3, v3, v4
s_and_b32 s45, s3, 1             ; m
s_lshl_b32 s44, s45, 1
v_xor_b32 v3, s44, v3
v_lshl_add_u32 v3, v3, 4, v2
s_lshr_b32 s46, s3, 1
s_and_b32 s47, s22, 1
s_mul_i32 s47, s47, {OWN}
s_add_u32 s48, s46, s47          ; n own
s_sub_u32 s49, {OWN}, s47
s_add_u32 s49, s49, s46          ; n partner
s_add_u32 s50, s46, {2*OWN}      ; n helper
s_mul_i32 s51, s45, 36864
s_cmp_eq_u32 s45, 0
""")
kwait()
stamp(1)
a("s_cselect_b32 s32, s8, s10\ns_cselect_b32 s33, s9, s11")
a(f"s_and_b32 s33, s33, 0xffff\ns_mov_b32 s34, {WB}\ns_mov_b32 s35, 0x20000")
addr = f"""
v_lshrrev_b32 v5, 3, v0
v_mul_u32_u24 v6, 1152, v5
v_bfe_u32 v5, v5, 1, 1
s_and_b32 s44, s3, 1
s_lshl_b32 s44, s44, 1
v_or_b32 v5, s44, v5             ; sigma
v_lshlrev_b32 v5, 1, v5
v_and_b32 v7, 7, v0
v_xor_b32 v5, v5, v7
v_lshl_add_u32 v5, v5, 4, v6
s_mul_i32 s60, s23, 288*1152
s_lshl_b32 s44, s61, 7
s_add_u32 s60, s60, s44
s_mul_i32 s44, s3, 8*1152
s_add_u32 s60, s60, s44
s_lshl_b32 s53, s3, 10
s_add_u32 s53, s53, {DN}
v_mov_b32 v33, {FLG}
v_lshrrev_b32 v12, 4, v0        ; g
v_bfe_u32 v13, v0, 2, 2         ; r
v_bfe_u32 v14, v0, 1, 1         ; m
v_and_b32 v15, 1, v0            ; ch
v_lshlrev_b32 v16, 3, v12
v_add_u32 v16, v16, v13         ; 8g+r
v_lshlrev_b32 v17, 7, v16
v_lshlrev_b32 v16, 6, v16
v_mul_u32_u24 v18, 36864, v14
v_add_u32 v16, v16, v18
v_and_b32 v18, 1, v12
v_lshl_add_u32 v19, v14, 1, v18 ; 2m + (g&1)
v_xor_b32 v19, s3, v19
v_lshl_add_u32 v16, v19, 4, v16
v_lshl_add_u32 v16, v15, 3, v16
v_lshrrev_b32 v19, 1, v13
v_lshl_add_u32 v19, v18, 1, v19 ; sigma = (r>>1) | (g&1)<<1
v_xor_b32 v19, s3, v19
v_lshl_add_u32 v17, v19, 5, v17
v_and_b32 v19, 3, v0
v_lshl_add_u32 v17, v19, 3, v17
v_add_u32 v17, {DN}, v17
v_and_b32 v19, 7, v0            ; t
v_lshlrev_b32 v18, 2, v18
v_xor_b32 v18, v18, v19         ; t ^ ((g&1)<<2)
v_lshlrev_b32 v18, 4, v18
v_lshl_add_u32 v18, v12, 7, v18
v_add_u32 v18, {XS}, v18
v_lshlrev_b32 v19, 4, v19       ; t*16
v_and_b32 v28, 1, v12
v_lshrrev_b32 v29, 5, v0
v_lshl_add_u32 v28, v28, 1, v29
v_lshl_add_u32 v28, v28, 2, v19
s_lshl_b32 s56, s22, 9
s_lshl_b32 s44, s3, 7
s_add_u32 s56, s56, s44
s_add_u32 s57, s56, {HB1}
s_add_u32 s56, s56, {HB0}
v_lshl_add_u32 v31, v12, 7, v19
v_bfe_u32 v30, v0, 3, 1
v_lshl_add_u32 v30, v30, 9, v31
s_mul_i32 s58, s23, 4608
s_add_u32 s59, s58, {HB1}
s_add_u32 s58, s58, {HB0}
v_lshl_add_u32 v29, v12, 11, v19
s_lshl_b32 s52, s61, 15
s_lshl_b32 s44, s3, 13
s_add_u32 s52, s52, s44
s_lshl_b32 s44, s23, 7
s_add_u32 s52, s52, s44
s_add_u32 s52, s52, {PART}
"""
nissued = [0]
def gu(nreg, cnt):
    if cnt == 0: return
    a(f"s_mul_i32 s54, s{nreg}, 147456\ns_lshl_b32 s55, s{nreg}, 10\ns_add_u32 m0, s55, s51")
    a("s_barrier" if nissued[0] == 0 else "s_nop 0")
    if nissued[0] == 0 and XD:
        a.srd(36, 12, WB); a.srd(28, 18, WS_USED)
        a(addr); a("s_waitcnt lgkmcnt(0)")
    for y in range(cnt):
        a("buffer_load_dwordx4 v3, s[32:35], s54 offen lds")
        nissued[0] += 1
        if nissued[0] == FB:
            if not XD:
                a.srd(36, 12, WB); a.srd(28, 18, WS_USED)
                a(addr); a("s_waitcnt lgkmcnt(0)")
            nplus(); a("v_mov_b32 v34, s20\ns_barrier")
            stamp(2)
        if GATE and nissued[0] == GATE:
            a("ds_write_b32 v33, v34")
        if y != cnt-1:
            a("s_add_u32 m0, m0, 2048\ns_add_u32 s54, s54, 2*147456")
gu(48, OWN//2); gu(49, OWN//2); gu(50, 18-OWN)
stamp(3)
a("s_mov_b32 m0, s53\ns_waitcnt vmcnt(0)")
stamp(4)
a("s_barrier")
stamp(5)
for s in range(18):
    a(f"ds_read_b64_tr_b16 v[{64+4*s}:{65+4*s}], v16 offset:{s*2048}")
    a(f"ds_read_b64_tr_b16 v[{66+4*s}:{67+4*s}], v16 offset:{s*2048+256}")
    if s % 2 == 1:
        a("buffer_load_dwordx4 v5, s[36:39], s60 offen lds")
        if s != 17: a(f"s_add_u32 m0, m0, 4096\ns_add_u32 s60, s60, {32*1152}")
stamp(6)
a("s_waitcnt lgkmcnt(0)\ns_barrier")
stamp(7, True)
for s in range(18):
    a(f"ds_read_b128 v[{172+4*s}:{175+4*s}], v18 offset:{s*512}")
    if s >= 6:
        t = s-6
        a("s_waitcnt lgkmcnt(6)")
        c = "0" if t == 0 else "v[20:23]"
        a(f"v_mfma_f32_16x16x32_bf16 v[20:23], v[{64+4*t}:{67+4*t}], v[{172+4*t}:{175+4*t}], {c}")
for t in range(12, 18):
    a(f"s_waitcnt lgkmcnt({17-t})")
    a(f"v_mfma_f32_16x16x32_bf16 v[20:23], v[{64+4*t}:{67+4*t}], v[{172+4*t}:{175+4*t}], v[20:23]")
stamp(8)
a(f"s_mov_b32 s48, {SPIN}\ns_mov_b32 s49, s58")
a.nop(6)
a("""
v_cvt_pk_bf16_f32 v24, v20, v21
v_cvt_pk_bf16_f32 v25, v22, v23
s_nop 1
v_permlane32_swap_b32 v24, v25
v_lshlrev_b32 v26, 16, v24
v_and_b32 v27, 0xffff0000, v24
v_mul_f32 v20, 0xbfb8aa3b, v26
v_mul_f32 v21, 0xbfb8aa3b, v27
v_exp_f32 v20, v20
v_exp_f32 v21, v21
v_lshlrev_b32 v22, 16, v25
v_add_f32 v20, 1.0, v20
v_add_f32 v21, 1.0, v21
v_rcp_f32 v20, v20
v_rcp_f32 v21, v21
v_and_b32 v23, 0xffff0000, v25
v_mul_f32 v26, v26, v20
v_mul_f32 v27, v27, v21
v_cvt_pk_bf16_f32 v26, v26, v27
v_and_b32 v27, 0xffff0000, v26
v_lshlrev_b32 v26, 16, v26
v_mul_f32 v26, v26, v22
v_mul_f32 v27, v27, v23
v_cvt_pk_bf16_f32 v26, v26, v27
s_mov_b32 exec_lo, 0x00ff00ff
s_mov_b32 exec_hi, 0x00ff00ff
buffer_store_dword v26, v28, s[28:31], s56 offen
s_mov_b64 exec, -1
""")
stamp(9)
a("s_waitcnt vmcnt(1)\ns_barrier")
stamp(10)
HR = 172
def hloads():
    for i in range(4):
        a(f"buffer_load_dwordx4 v[{HR+4*i}:{HR+4*i+3}], v30, s[28:31], s49 offen offset:{1024*i} sc1")
    a(f"s_add_u32 s44, s49, 4096\nbuffer_load_dwordx4 v[{HR+16}:{HR+19}], v31, s[28:31], s44 offen sc1")
hloads()
for c in range(9):
    a(f"ds_read_b64_tr_b16 v[{136+4*c}:{137+4*c}], v17 offset:{c*4096}")
    a(f"ds_read_b64_tr_b16 v[{138+4*c}:{139+4*c}], v17 offset:{c*4096+512}")
a("H_CHK:")
for i in range(5):
    a(f"s_waitcnt vmcnt({4-i})")
    if i == 0: a(f"v_max3_u32 v8, v{HR}, v{HR+1}, v{HR+2}\nv_max_u32 v8, v8, v{HR+3}")
    else: a(f"v_max3_u32 v8, v8, v{HR+4*i}, v{HR+4*i+1}\nv_max3_u32 v8, v8, v{HR+4*i+2}, v{HR+4*i+3}")
a(f"""
v_cmp_eq_u32 vcc, -1, v8
s_waitcnt lgkmcnt(0)
s_cbranch_vccnz H_RETRY
H_OK:
""")
stamp(11)
count_stamp(14, "s48")
for kk in range(9):
    d = "v[64:67]" if kk % 2 == 0 else "v[68:71]"
    c = "0" if kk < 2 else d
    h = HR + 4*(kk//2)
    a(f"v_mfma_f32_16x16x32_bf16 {d}, v[{136+4*kk}:{139+4*kk}], v[{h}:{h+3}], {c}")
a.nop(8)
for k in range(4):
    a(f"v_add_f32_dpp v{64+k}, v{68+k}, v{64+k} row_ror:8 row_mask:0xf bank_mask:0xf")
a("""
s_mov_b32 exec_lo, 0x00ff00ff
s_mov_b32 exec_hi, 0x00ff00ff
buffer_store_dwordx4 v[64:67], v29, s[28:31], s52 offen sc1
buffer_store_dword v26, v28, s[28:31], s57 offen sc1
""")
stamp(12)
if B2MODE == "issue": a("s_barrier")
flush_stamps([0,1,2,3,4,5,6,7,8,9,10,11,12,14,13], 0, "C_NOST")
a(f"""s_endpgm
H_RETRY:
s_sub_u32 s48, s48, 1
s_cbranch_scc1 H_OK
s_cmp_lt_u32 s48, {SPIN-HLOC}
s_cbranch_scc0 H_AGAIN
s_mov_b32 exec_lo, 0x00ff00ff
s_mov_b32 exec_hi, 0x00ff00ff
s_cmp_eq_u32 s48, {SPIN-HLOC-1}
s_cbranch_scc0 H_NOG
buffer_store_dword v26, v28, s[28:31], s57 offen sc1
H_NOG:
s_mov_b64 exec, -1
s_bitcmp1_b32 s48, 0
s_cselect_b32 s49, s58, s59
H_AGAIN:
""")
hloads()
a("s_branch H_CHK")

E0 = 96
D0 = 64
Cb0, Cb1, K1, K0, KA, KB, M1, M0, MA, MB = range(40, 50)
a("SEL:")
stamp(16)
if PRIO: a(f"s_setprio {PRIO}")
a(f"""
v_and_b32 v2, 1, v0
v_bfe_u32 v3, v0, 1, 1
v_bfe_i32 v4, v0, 5, 1
v_bfe_i32 v5, v0, 4, 1
v_add_u32 v{Cb0}, -1, v2
v_add_u32 v{Cb1}, -1, v3
v_xor_b32 v{K1}, v{Cb1}, v4
v_xor_b32 v{K0}, v{Cb0}, v4
v_not_b32 v{KA}, v4
v_mov_b32 v{KB}, v4
v_xor_b32 v{M1}, v{Cb1}, v5
v_xor_b32 v{M0}, v{Cb0}, v5
v_not_b32 v{MA}, v5
v_mov_b32 v{MB}, v5
v_lshlrev_b32 v1, 4, v0
v_lshlrev_b32 v2, 7, v0
v_sub_u32 v2, {2047<<5}, v2
v_lshrrev_b32 v12, 3, v0
v_lshlrev_b32 v12, 4, v12
v_mov_b32 v33, {FLG}
""")
kwait()
a("s_barrier")
a.srd(28, 18, WS_USED); a.srd(24, 4, XB); a.srd(40, 14, XB)
a(f"""
s_mov_b32 s46, {KEYS}
s_mov_b32 s47, {KEYS+4096}
s_mov_b32 s48, {SPIN}
s_mov_b32 s61, {DONE}
s_movk_i32 s58, {NH}
s_sub_u32 s22, s2, {NH}
s_lshl_b32 s60, s22, 11
s_add_u32 s60, s60, {PART}
v_bfe_u32 v5, v0, 4, 1
v_lshrrev_b32 v4, 5, v0
v_lshl_add_u32 v5, v5, 1, v4
s_lshl_b32 s44, s22, 2
v_add_u32 v5, s44, v5
v_lshlrev_b32 v5, 1, v5
s_waitcnt lgkmcnt(0)
""")
nplus()
a("""
s_lshr_b32 s44, s20, 5
s_add_u32 s51, s44, s20
s_lshr_b32 s44, s20, 10
s_add_u32 s52, s44, s20
s_lshr_b32 s44, s20, 15
s_add_u32 s53, s44, s20
s_and_b32 s50, s20, 31
s_and_b32 s51, s51, 31
s_and_b32 s52, s52, 31
s_and_b32 s53, s53, 31
""")
for k in range(1, 4):
    a(f"s_sub_u32 s{50+k}, s{50+k}, {32*k}")
for i in range(8):
    for k in range(4):
        if i == 0: a(f"v_add_u32 v{E0+k}, s{50+k}, v2")
        else: a(f"v_add_u32 v{E0+4*i+k}, {hex((-8192) & 0xffffffff)}, v{E0+4*(i-1)+k}")
a("s_barrier")
stamp(17)
if GATE:
    a(f"""
s_mov_b32 s49, {SPIN}
GATEL:
ds_read_b32 v34, v33
s_sub_u32 s49, s49, 1
s_waitcnt lgkmcnt(0)
v_cmp_eq_u32 vcc, s20, v34
s_cbranch_vccnz GATED
s_cbranch_scc0 GATEL
GATED:
""")
stamp(26)
a("POLL:")
for i in range(8):
    a(f"buffer_load_dwordx4 v[{D0+4*i}:{D0+4*i+3}], v1, s[28:31], s{46+i//4} offen offset:{1024*(i%4)} sc1")
a("v_mov_b32 v6, 0\nv_mov_b32 v7, 0\nv_mov_b32 v8, 0")
for i in range(8):
    a(f"s_waitcnt vmcnt({7-i})")
    d = D0+4*i; e = E0+4*i
    a(f"""
v_med3_u32 v9, v6, v{d}, v{d+1}
v_max3_u32 v6, v6, v{d}, v{d+1}
v_bitop3_b32 v8, v{d}, v{e}, v8 bitop3:0xbe
v_max_u32 v7, v7, v9
v_med3_u32 v9, v6, v{d+2}, v{d+3}
v_max3_u32 v6, v6, v{d+2}, v{d+3}
v_bitop3_b32 v8, v{d+1}, v{e+1}, v8 bitop3:0xbe
v_max_u32 v7, v7, v9
v_bitop3_b32 v8, v{d+2}, v{e+2}, v8 bitop3:0xbe
v_bitop3_b32 v8, v{d+3}, v{e+3}, v8 bitop3:0xbe
""")
a("""
v_and_b32 v8, 0xffff, v8
v_cmp_ne_u32 vcc, 0, v8
s_sub_u32 s48, s48, 1
s_cbranch_vccz POLL_OK
s_cbranch_scc0 POLL
POLL_OK:
""")
stamp(18)
count_stamp(27, "s48")
A, B, P, Q = 6, 7, 9, 10
X1, X2, X3 = "quad_perm:[1,0,3,2]", "quad_perm:[2,3,0,1]", "quad_perm:[3,2,1,0]"
DM = "row_mask:0xf bank_mask:0xf"
def cross(perm, c, swap, last=False):
    sa, sb = (B, A) if swap else (A, B)
    a(f"v_mov_b32_dpp v{P}, v{sa} {perm} {DM}\nv_mov_b32_dpp v{Q}, v{sb} {perm} {DM}")
    a(f"v_med3_u32 v{A}, v{A}, v{P}, v{c}\nv_med3_u32 v{B}, v{B}, v{Q}, v{c}")
    if not last: a("s_nop 0")
def inlane(ca=None, cb=None, pad=2):
    global A, P
    if ca is None:
        a(f"v_max_u32 v{P}, v{A}, v{B}\nv_min_u32 v{B}, v{A}, v{B}")
    else:
        a(f"v_med3_u32 v{P}, v{A}, v{B}, v{ca}\nv_med3_u32 v{B}, v{A}, v{B}, v{cb}")
    A, P = P, A
    a.nop(pad)
def swaplevel(op):
    a(f"v_mov_b32 v{P}, v{A}\nv_mov_b32 v{Q}, v{B}\ns_nop 0\n{op} v{A}, v{P}\n{op} v{B}, v{Q}")
    a(f"v_max_u32 v{A}, v{A}, v{P}\nv_max_u32 v{B}, v{B}, v{Q}\ns_nop 0")
cross(X1, Cb0, True, True); inlane()
cross(X3, K1, True); cross(X1, K0, False, True); inlane(KA, KB, 0)
swaplevel("v_permlane32_swap_b32")
cross(X2, M1, False); cross(X1, M0, False, True); inlane(MA, MB, 0)
swaplevel("v_permlane16_swap_b32")
cross(X2, Cb1, False); cross(X1, Cb0, False, True); inlane()
a(f"v_max_u32_dpp v{P}, v{B}, v{A} row_mirror {DM}\nv_max_u32_dpp v{B}, v{A}, v{B} row_mirror {DM}\ns_nop 0")
A, P = P, A
cross(X2, Cb1, False); cross(X1, Cb0, False, True); inlane()
a(f"v_max_u32_dpp v6, v{B}, v{A} row_half_mirror {DM}")
A = 6
stamp(19)
a(f"""
v_bfe_u32 v15, v{A}, 5, 11
v_sub_u32 v15, 2047, v15
s_mov_b32 m0, {XS}
v_mul_u32_u24 v11, 1152, v15
s_mov_b32 s44, 0
v_add_u32 v13, v11, v12
""")
for i in range(9):
    a("buffer_load_dwordx4 v13, s[24:27], s44 offen lds")
    if i != 8: a("s_add_u32 m0, m0, 1024\ns_add_u32 s44, s44, 128")
a(f"""
s_barrier
v_min_u32_dpp v9, v{A}, v{A} {X1} {DM}
s_nop 1
v_min_u32_dpp v9, v9, v9 {X2} {DM}
s_nop 1
v_min_u32_dpp v9, v9, v9 row_half_mirror {DM}
v_mov_b32 v10, 0
""")
for q in range(0, 32, 2):
    a(f"v_cmp_ge_u32 vcc, v{D0+q}, v9\nv_cmp_ge_u32 s[44:45], v{D0+q+1}, v9\ns_nop 0\nv_addc_co_u32 v10, vcc, 0, v10, vcc\nv_addc_co_u32 v10, s[44:45], 0, v10, s[44:45]")
a("""
v_cmp_lt_u32 vcc, 2, v10
s_cbranch_vccnz FALLBACK
SEL_DONE:
ds_write_b32 v33, v9 offset:4
s_waitcnt vmcnt(0) lgkmcnt(0)
""")
stamp(20)
a(f"""
s_barrier
v_add_u32 v5, v5, v11
buffer_load_ushort v4, v5, s[24:27], 0 offen
v_lshrrev_b32 v15, 3, v15
v_cmp_gt_u32 s[56:57], s58, v15
v_lshlrev_b32 v15, 2, v15
v_and_b32 v3, 0xffff0000, v{A}
v_ashrrev_i32 v8, 31, v3
v_not_b32 v8, v8
v_or_b32 v8, 0x80000000, v8
v_xor_b32 v3, v3, v8
v_and_b32 v3, 0xffff0000, v3
v_mul_f32 v3, 0xbfb8aa3b, v3
v_exp_f32 v3, v3
s_mov_b32 s48, {SPIN}
v_add_f32 v3, 1.0, v3
v_rcp_f32 v3, v3
s_nop 0
v_cvt_pk_bf16_f32 v3, v3, v3
v_and_b32 v3, 0xffff0000, v3
s_barrier
s_barrier
""")
stamp(22)
a("""
buffer_load_dword v13, v15, s[28:31], s61 offen sc1
G_POLL:
buffer_load_dwordx4 v[16:19], v1, s[28:31], s60 offen sc1
buffer_load_dwordx4 v[20:23], v1, s[28:31], s60 offen offset:1024 sc1
s_sub_u32 s48, s48, 1
s_waitcnt vmcnt(1)
v_max3_u32 v8, v16, v17, v18
v_max_u32 v8, v8, v19
s_waitcnt vmcnt(0)
v_max3_u32 v8, v8, v20, v21
v_max3_u32 v8, v8, v22, v23
v_add_f32 v16, v16, v20
v_cmp_eq_u32 vcc, -1, v8
v_add_f32 v17, v17, v21
v_add_f32 v18, v18, v22
v_add_f32 v19, v19, v23
s_cbranch_vccz G_OK
s_cbranch_scc0 G_POLL
G_OK:
""")
stamp(23)
count_stamp(28, "s48")
a(f"""
v_cmp_ne_u32 vcc, s20, v13
v_permlane32_swap_b32 v16, v17
v_permlane32_swap_b32 v18, v19
v_add_f32 v16, v16, v17
v_add_f32 v18, v18, v19
s_and_b64 vcc, vcc, s[56:57]
v_lshlrev_b32 v4, 16, v4
s_cbranch_scc1 DONEL
DONE_OK:
v_permlane16_swap_b32 v16, v18
v_add_f32 v16, v16, v18
s_nop 1
v_add_f32_dpp v8, v16, v16 row_ror:8 row_mask:0xf bank_mask:0xf
v_cvt_pk_bf16_f32 v8, v8, v8
v_and_b32 v8, 0xffff0000, v8
v_mul_f32 v8, v8, v3
v_cvt_pk_bf16_f32 v8, v8, v8
v_and_b32 v8, 0xffff0000, v8
v_fma_f32 v8, v4, 0, v8
v_add_f32 v8, v4, v8
v_cvt_pk_bf16_f32 v8, v8, v8
s_mov_b32 exec_lo, 0x00ff00ff
s_mov_b32 exec_hi, 0x00ff00ff
buffer_store_short v8, v5, s[40:43], 0 offen {FINFL}
s_cmp_lg_u32 s2, {NH}
s_cbranch_scc1 F_NOE
s_mov_b64 exec, 1
v_mov_b32 v8, s20
v_mov_b32 v9, s21
v_mov_b32 v10, 0
buffer_store_dwordx2 v[8:9], v10, s[28:31], 0 offen sc1
F_NOE:
""")
stamp(24)
flush_stamps([16,17,18,19,20,22,23,24,26,27,28,25])
a(f"""END:
s_endpgm
DONEL:
s_mov_b32 s48, {SPIN}
DONEL2:
buffer_load_dword v13, v15, s[28:31], s61 offen sc1
s_waitcnt vmcnt(0)
v_cmp_ne_u32 vcc, s20, v13
s_and_b64 vcc, vcc, s[56:57]
s_cbranch_scc0 DONE_OK
s_sub_u32 s48, s48, 1
s_cbranch_scc0 DONEL2
s_branch DONE_OK
FALLBACK:
s_mov_b32 s44, 0
s_mov_b32 s49, 0
v_bfe_u32 v14, v0, 3, 1
v_lshlrev_b32 v14, 2, v14
v_xor_b32 v14, v14, v0
v_and_b32 v14, 7, v14
FB_LOOP:
""")
for q in range(0, 32, 2):
    a(f"v_subrev_u32 v8, s44, v{D0+q}\nv_subrev_u32 v9, s44, v{D0+q+1}")
    a("v_max_u32 v7, v8, v9" if q == 0 else "v_max3_u32 v7, v7, v8, v9")
for dpp in ["row_shr:1 row_mask:0xf", "row_shr:2 row_mask:0xf", "row_shr:4 row_mask:0xf", "row_shr:8 row_mask:0xf", "row_bcast:15 row_mask:0xa", "row_bcast:31 row_mask:0xc"]:
    a(f"s_nop 1\nv_max_u32_dpp v7, v7, v7 {dpp} bank_mask:0xf")
a(f"""
s_nop 1
v_readlane_b32 s45, v7, 63
v_cmp_eq_u32 vcc, s49, v14
s_nop 3
s_add_u32 s44, s44, s45
v_mov_b32 v8, s44
v_cndmask_b32 v{A}, v{A}, v8, vcc
s_add_u32 s49, s49, 1
s_cmp_lt_u32 s49, 8
s_cbranch_scc1 FB_LOOP
v_mov_b32 v9, s44
v_bfe_u32 v15, v{A}, 5, 11
v_sub_u32 v15, 2047, v15
v_mul_u32_u24 v11, 1152, v15
v_add_u32 v13, v11, v12
s_mov_b32 m0, {XS}
s_mov_b32 s44, 0
FB_X:
buffer_load_dwordx4 v13, s[24:27], s44 offen lds
s_add_u32 m0, m0, 1024
s_add_u32 s44, s44, 128
s_cmp_lt_u32 s44, 1152
s_cbranch_scc1 FB_X
s_branch SEL_DONE
""")
a("CODE_END:")
a('.section .rodata,"a"\n.p2align 6')
a.lines.append(kernel_desc(K, 245, 100))
open(sys.argv[1] if len(sys.argv) > 1 else "v4.s", "w").write(a.text())
```

```python
import sys, os
from asmlib import *

XB = 2048*1152
WB = 576*4608*2
WS_USED = 0x400000
KEYS = 0x1000
DONE = 0x4000
HB0 = 0x10000
HB1 = 0x30000
PART = 0x50000
STOFF = 0x380000
GU, DN, XS, FLG = 0, 73728, 110592, 119808
LDS = 119936
NH = 112
env = lambda k, d: os.environ.get(k, d)
ST = int(env("ST", "0"))
OWN = int(env("OWN", "6"))
FB = int(env("FB", "3"))
PF1 = int(env("PF1", "3"))
GATE = int(env("GATE", "8"))
PRIO = int(env("PRIO", "3"))
CW = int(env("CW", "2"))
B2MODE = "issue"
XD = int(env("XD", "1"))
COPYFL = env("COPYFL", "sc1")
FINFL = env("FINFL", "sc1")
HLOC = int(env("HLOC", "10"))
SPIN = 20000
DBG = [int(x) for x in env("DBG", "").split(",") if x]
DBGMIN = int(env("DBGMIN", "0"))
K = "standalone__moe_arch_mod__prompt_kernel"

a = Asm()
a.lines.append(HEADER + f"; @launch grid=(256,1,1) block=(384,1,1) lds={LDS}\n"
  '.amdgcn_target "amdgcn-amd-amdhsa--gfx950"\n.text')
a(f".globl {K}\n.p2align 8\n.type {K},@function\n{K}:")

def stamp(i, wait=False):
    if ST:
        a(f"s_memrealtime s[{64+2*(i%16)}:{65+2*(i%16)}]")
        if wait: a("s_waitcnt lgkmcnt(0)")
def count_stamp(i, reg):
    if ST: a(f"s_sub_u32 s{64+2*(i%16)}, {SPIN}, {reg}\ns_mul_i32 s{64+2*(i%16)}, s{64+2*(i%16)}, 100\ns_add_u32 s{64+2*(i%16)}, s{64+2*(i%16)}, s62")
def flush_stamps(idx, cond=None, lbl=None, base=0):
    if not ST: return
    a("s_mov_b64 exec, -1")
    if cond is not None:
        a(f"s_cmp_lg_u32 s3, {cond}\ns_cbranch_scc1 {lbl}")
    a("s_waitcnt vmcnt(0)")
    stamp(idx[-1])
    a("s_waitcnt lgkmcnt(0)")
    m = 0
    for i in idx:
        a(f"v_writelane_b32 v1, s{64+2*(i%16)}, {i}")
        m |= 1 << i
    a(f"v_lshlrev_b32 v2, 2, v0\ns_lshl_b32 s63, s2, 8\ns_add_u32 s63, s63, {STOFF}")
    a(f"s_mov_b32 exec_lo, {hex(m & 0xffffffff)}\ns_mov_b32 exec_hi, {hex(m >> 32)}")
    a(f"buffer_store_dword v1, v2, s[28:31], s63 offen")
    if DBG:
        a("s_mov_b64 exec, -1")
        m = 0
        for i in idx:
            if i in DBG:
                slot = DBG.index(i)
                r = f"s{64+2*(i%16)}"
                if DBGMIN or i == 0: a(f"s_not_b32 {r}, {r}")
                a(f"v_writelane_b32 v1, {r}, {slot}")
                m |= 1 << slot
        if m:
            a.srd(24, 16, 256)
            a(f"s_mov_b32 exec_lo, {hex(m)}\ns_mov_b32 exec_hi, 0\nbuffer_atomic_umax v1, v2, s[24:27], 0 offen")
    if lbl is not None: a(f"{lbl}:")

def kwait(e=True):
    a("s_waitcnt lgkmcnt(0)")
    if ST: a("s_mov_b32 s62, s96")
    if e: a("s_load_dwordx2 s[20:21], s[18:19], 0")
def nplus():
    a("s_add_u32 s20, s20, 1\ns_addc_u32 s21, s21, 0")
def ffn_ids():
    a(f"""
s_sub_u32 s44, s2, {NH}
s_and_b32 s22, s44, 7
s_lshr_b32 s44, s44, 3
s_lshl_b32 s23, s22, 1
s_mul_i32 s22, s22, 18
s_add_u32 s22, s22, s44
s_cmp_ge_u32 s44, 9
s_cselect_b32 s45, 9, 0
s_addc_u32 s23, s23, 0
s_sub_u32 s61, s44, s45
""")

if ST: a("s_memrealtime s[96:97]")
stamp(0)
a(f"""
s_cmp_ge_u32 s2, 256
s_cbranch_scc1 END
s_load_dwordx16 s[4:19], s[0:1], 0
""")
if int(env("CPF", "1")):
    a(f"""
s_getpc_b64 s[22:23]
CPC:
v_lshlrev_b32 v1, 7, v0
v_min_u32 v1, CODE_END-CPC-4, v1
global_load_dword v244, v1, s[22:23]
""")
a(f"""
v_lshrrev_b32 v1, 6, v0
v_and_b32 v0, 63, v0
v_readfirstlane_b32 s3, v1
s_nop 0
s_cmp_eq_u32 s3, 5
s_cbranch_scc0 NOTROUTER
""")
a(f"""
v_lshrrev_b32 v1, 3, v0
v_and_b32 v2, 7, v0
v_lshlrev_b32 v2, 4, v2
v_mul_u32_u24 v3, 1152, v1
v_add_u32 v3, v3, v2
s_mul_i32 s50, s2, 9216
""")
ffn_ids()
a(f"""
v_mov_b32 v4, -1
v_mov_b32 v5, -1
v_mov_b32 v6, -1
v_mov_b32 v7, -1
v_lshlrev_b32 v80, 11, v1
v_add_u32 v80, v80, v2           ; (l>>3)*2048 + (l&7)*16
s_lshl_b32 s52, s61, 15
s_lshl_b32 s45, s23, 7
s_add_u32 s52, s52, s45
s_add_u32 s52, s52, {PART}
v_lshrrev_b32 v81, 5, v0
v_mul_u32_u24 v81, {HB1-HB0-512}, v81
v_lshl_add_u32 v81, v0, 4, v81
s_lshl_b32 s54, s22, 9
s_add_u32 s54, s54, {HB0}
s_cmp_lt_u32 s2, {NH}
s_cselect_b32 s52, 0x7000000, s52
s_cselect_b32 s54, 0x7000000, s54
s_add_u32 s53, s52, 16384
""")
kwait()
stamp(33)
a.srd(24, 4, XB); a.srd(32, 6, 1152)
for i in range(9):
    a(f"buffer_load_dwordx4 v[{8+4*i}:{11+4*i}], v3, s[24:27], s50 offen offset:{128*i}")
for i in range(9):
    a(f"buffer_load_dwordx4 v[{44+4*i}:{47+4*i}], v2, s[32:35], 0 offen offset:{128*i}")
a.srd(28, 18, WS_USED)
a(f"""
buffer_store_dwordx4 v[4:7], v80, s[28:31], s52 offen sc1
buffer_store_dwordx4 v[4:7], v80, s[28:31], s53 offen sc1
buffer_store_dwordx4 v[4:7], v81, s[28:31], s54 offen sc1
""")
stamp(40)
a("s_barrier")
stamp(41)
a.srd(36, 14, XB)
a(f"""
s_lshl_b32 s44, s2, 3
v_add_u32 v85, s44, v1
v_and_b32 v86, 3, v1            ; k
v_mul_u32_u24 v87, 5, v86
v_cmp_ne_u32 vcc, 0, v86
v_sub_u32 v88, 2047, v85
v_lshlrev_b32 v88, 5, v88
v_lshlrev_b32 v85, 2, v85
s_lshl_b32 s47, s2, 2
s_add_u32 s47, s47, {DONE}
v_mov_b32 v90, 0
v_mov_b32 v91, 0
v_mov_b32 v92, 0
v_mov_b32 v93, 0
s_waitcnt lgkmcnt(0)
""")
stamp(39)
nplus()
a(f"""
v_mov_b32 v86, s20
v_lshrrev_b32 v87, v87, v86
v_cndmask_b32 v89, 0, v86, vcc
v_add_u32 v89, v89, v87
v_and_or_b32 v88, v89, 31, v88
s_mov_b32 s46, {KEYS}
v_mov_b32 v82, 0x207
""")
for i in range(9):
    a(f"s_waitcnt vmcnt({8-i+3})")
    for k in range(4):
        a(f"v_dot2c_f32_bf16 v{90+k}, v{8+4*i+k}, v{44+4*i+k}")
stamp(34)
a.nop(3)
a(f"""
v_add_f32 v4, v90, v91
v_add_f32 v6, v92, v93
v_add_f32 v4, v4, v6
s_nop 1
v_add_f32_dpp v4, v4, v4 quad_perm:[1,0,3,2] row_mask:0xf bank_mask:0xf
s_nop 1
v_add_f32_dpp v4, v4, v4 quad_perm:[2,3,0,1] row_mask:0xf bank_mask:0xf
s_nop 1
v_add_f32_dpp v4, v4, v4 row_half_mirror row_mask:0xf bank_mask:0xf
v_cvt_pk_bf16_f32 v5, v4, v4
v_cmp_o_f32 vcc, v4, v4
v_ashrrev_i32 v6, 31, v5
v_or_b32 v6, 0x80000000, v6
v_xor_b32 v6, v6, v5
v_cndmask_b32 v6, 0, v6, vcc
v_and_b32 v6, 0xffff0000, v6
v_or_b32 v6, v6, v88
s_mov_b32 exec_lo, 0x01010101
s_mov_b32 exec_hi, 0x01010101
s_waitcnt vmcnt(0)
buffer_store_dword v6, v85, s[28:31], s46 offen sc1
s_mov_b64 exec, -1
""")
stamp(42)
a("s_barrier")
stamp(35)
a("""
v_cmp_class_f32 vcc, v4, v82
s_cbranch_vccnz R_SLOW
R_COPY:
s_barrier
""")
a(f"""
s_cmp_lt_u32 s2, {NH}
s_cbranch_scc1 R_GO
v_mov_b32 v80, {FLG+4}
s_barrier
ds_read_b32 v80, v80
s_barrier
s_barrier
s_waitcnt lgkmcnt(0)
v_cmp_lt_u32 vcc, v6, v80
s_and_b64 exec, exec, vcc
s_cbranch_execz R_END
R_GO:
""")
stamp(36)
for i in range(9):
    a(f"buffer_store_dwordx4 v[{8+4*i}:{11+4*i}], v3, s[36:39], s50 offen offset:{128*i} {COPYFL}")
a(f"""
s_cmp_lt_u32 s2, {NH}
s_cbranch_scc0 R_END
v_mov_b32 v5, 0
s_mov_b64 exec, 1
s_waitcnt vmcnt(0)
buffer_store_dword v86, v5, s[28:31], s47 offen sc1
R_END:
""")
stamp(37)
flush_stamps([33,34,35,36,37,39,40,41,42,38])
a("""s_endpgm
R_SLOW:
s_mov_b32 s44, 0x7f807f80
s_mov_b32 s45, 0x00400040
""")
for i in range(36):
    r = 8+i
    a(f"v_and_b32 v80, s44, v{r}\nv_add_u32 v80, 0x00800080, v80\nv_lshrrev_b32 v80, 9, v80\nv_and_or_b32 v{r}, v80, s45, v{r}")
a("s_branch R_COPY")

a(f"""
NOTROUTER:
s_cmp_ge_u32 s2, {NH}
s_cbranch_scc1 FFN
s_cmp_lg_u32 s3, 4
s_cbranch_scc1 END
""")
R0 = 32*OWN
NGU = (576-R0)*9
nb_gu = -(-NGU // (14*64))
NDN = 18*288
nb_dn = -(-NDN // (14*64))
a(f"""
s_lshr_b32 s44, s2, 3
s_lshl_b32 s44, s44, 6
s_and_b32 s45, s2, 7
s_mul_i32 s46, s45, {18*36864}
s_mul_i32 s45, s45, 1152
s_add_u32 s45, s45, {R0*9216}
v_add_u32 v2, s44, v0
""")
for blk in range(nb_gu):
    a(f"""
v_add_u32 v4, {blk*14*64}, v2
v_mul_u32_u24 v5, 7282, v4
v_lshrrev_b32 v5, 16, v5
v_mul_u32_u24 v6, 9, v5
v_sub_u32 v4, v4, v6
v_mul_u32_u24 v5, 9216, v5
v_lshl_add_u32 v4, v4, 7, v5
v_add_u32 v{8+blk}, s45, v4
""")
for blk in range(nb_dn):
    a(f"v_add_u32 v4, {blk*14*64}, v2\nv_lshlrev_b32 v{16+blk}, 7, v4")
if NDN % (14*64):
    a(f"v_cmp_gt_u32 vcc, {NDN}, v4\nv_mov_b32 v5, 0x7000000\ns_nop 0\nv_cndmask_b32 v{16+nb_dn-1}, v5, v{16+nb_dn-1}, vcc")
kwait(XD)
a.srd(32, 8, WB); a.srd(36, 10, WB); a.srd(40, 12, WB)
if ST: a.srd(28, 18, WS_USED)
pfl = []
for blk in range(nb_gu):
    pfl += [f"buffer_load_dword v24, v{8+blk}, s[32:35], 0 offen", f"buffer_load_dword v24, v{8+blk}, s[36:39], 0 offen"]
for blk in range(nb_dn):
    pfl.append(f"buffer_load_dword v24, v{16+blk}, s[40:43], s46 offen")
a("s_barrier")
if XD: a("s_waitcnt lgkmcnt(0)")
for t in pfl[:PF1]: a(t)
a("s_barrier")
stamp(8)
for t in pfl[PF1:]: a(t)
a(f"s_waitcnt vmcnt({nb_dn})")
stamp(9)
a(f"s_waitcnt vmcnt({CW})\ns_barrier")
stamp(10)
flush_stamps([0,8,9,10,11])
a("s_endpgm")

a(f"""
FFN:
s_cmp_eq_u32 s3, 4
s_cbranch_scc1 SEL
""")
ffn_ids()
a(f"""
v_lshrrev_b32 v2, 2, v0
v_mul_u32_u24 v2, 9216, v2
s_lshl_b32 s44, s22, 6
v_add_u32 v2, s44, v2
v_and_b32 v3, 3, v0
v_lshrrev_b32 v4, 5, v0
v_xor_b32 v3, v3, v4
s_and_b32 s45, s3, 1             ; m
s_lshl_b32 s44, s45, 1
v_xor_b32 v3, s44, v3
v_lshl_add_u32 v3, v3, 4, v2
s_lshr_b32 s46, s3, 1
s_and_b32 s47, s22, 1
s_mul_i32 s47, s47, {OWN}
s_add_u32 s48, s46, s47          ; n own
s_sub_u32 s49, {OWN}, s47
s_add_u32 s49, s49, s46          ; n partner
s_add_u32 s50, s46, {2*OWN}      ; n helper
s_mul_i32 s51, s45, 36864
s_cmp_eq_u32 s45, 0
""")
kwait()
stamp(1)
a("s_cselect_b32 s32, s8, s10\ns_cselect_b32 s33, s9, s11")
a(f"s_and_b32 s33, s33, 0xffff\ns_mov_b32 s34, {WB}\ns_mov_b32 s35, 0x20000")
addr = f"""
v_lshrrev_b32 v5, 3, v0
v_mul_u32_u24 v6, 1152, v5
v_bfe_u32 v5, v5, 1, 1
s_and_b32 s44, s3, 1
s_lshl_b32 s44, s44, 1
v_or_b32 v5, s44, v5             ; sigma
v_lshlrev_b32 v5, 1, v5
v_and_b32 v7, 7, v0
v_xor_b32 v5, v5, v7
v_lshl_add_u32 v5, v5, 4, v6
s_mul_i32 s60, s23, 288*1152
s_lshl_b32 s44, s61, 7
s_add_u32 s60, s60, s44
s_mul_i32 s44, s3, 8*1152
s_add_u32 s60, s60, s44
s_lshl_b32 s53, s3, 10
s_add_u32 s53, s53, {DN}
v_mov_b32 v33, {FLG}
v_lshrrev_b32 v12, 4, v0        ; g
v_bfe_u32 v13, v0, 2, 2         ; r
v_bfe_u32 v14, v0, 1, 1         ; m
v_and_b32 v15, 1, v0            ; ch
v_lshlrev_b32 v16, 3, v12
v_add_u32 v16, v16, v13         ; 8g+r
v_lshlrev_b32 v17, 7, v16
v_lshlrev_b32 v16, 6, v16
v_mul_u32_u24 v18, 36864, v14
v_add_u32 v16, v16, v18
v_and_b32 v18, 1, v12
v_lshl_add_u32 v19, v14, 1, v18 ; 2m + (g&1)
v_xor_b32 v19, s3, v19
v_lshl_add_u32 v16, v19, 4, v16
v_lshl_add_u32 v16, v15, 3, v16
v_lshrrev_b32 v19, 1, v13
v_lshl_add_u32 v19, v18, 1, v19 ; sigma = (r>>1) | (g&1)<<1
v_xor_b32 v19, s3, v19
v_lshl_add_u32 v17, v19, 5, v17
v_and_b32 v19, 3, v0
v_lshl_add_u32 v17, v19, 3, v17
v_add_u32 v17, {DN}, v17
v_and_b32 v19, 7, v0            ; t
v_lshlrev_b32 v18, 2, v18
v_xor_b32 v18, v18, v19         ; t ^ ((g&1)<<2)
v_lshlrev_b32 v18, 4, v18
v_lshl_add_u32 v18, v12, 7, v18
v_add_u32 v18, {XS}, v18
v_lshlrev_b32 v19, 4, v19       ; t*16
v_and_b32 v28, 1, v12
v_lshrrev_b32 v29, 5, v0
v_lshl_add_u32 v28, v28, 1, v29
v_lshl_add_u32 v28, v28, 2, v19
s_lshl_b32 s56, s22, 9
s_lshl_b32 s44, s3, 7
s_add_u32 s56, s56, s44
s_add_u32 s57, s56, {HB1}
s_add_u32 s56, s56, {HB0}
v_lshl_add_u32 v31, v12, 7, v19
v_bfe_u32 v30, v0, 3, 1
v_lshl_add_u32 v30, v30, 9, v31
s_mul_i32 s58, s23, 4608
s_add_u32 s59, s58, {HB1}
s_add_u32 s58, s58, {HB0}
v_lshl_add_u32 v29, v12, 11, v19
s_lshl_b32 s52, s61, 15
s_lshl_b32 s44, s3, 13
s_add_u32 s52, s52, s44
s_lshl_b32 s44, s23, 7
s_add_u32 s52, s52, s44
s_add_u32 s52, s52, {PART}
"""
nissued = [0]
def gu(nreg, cnt):
    if cnt == 0: return
    a(f"s_mul_i32 s54, s{nreg}, 147456\ns_lshl_b32 s55, s{nreg}, 10\ns_add_u32 m0, s55, s51")
    a("s_barrier" if nissued[0] == 0 else "s_nop 0")
    if nissued[0] == 0 and XD:
        a.srd(36, 12, WB); a.srd(28, 18, WS_USED)
        a(addr); a("s_waitcnt lgkmcnt(0)")
    for y in range(cnt):
        a("buffer_load_dwordx4 v3, s[32:35], s54 offen lds")
        nissued[0] += 1
        if nissued[0] == FB:
            if not XD:
                a.srd(36, 12, WB); a.srd(28, 18, WS_USED)
                a(addr); a("s_waitcnt lgkmcnt(0)")
            nplus(); a("v_mov_b32 v34, s20\ns_barrier")
            stamp(2)
        if GATE and nissued[0] == GATE:
            a("ds_write_b32 v33, v34")
        if y != cnt-1:
            a("s_add_u32 m0, m0, 2048\ns_add_u32 s54, s54, 2*147456")
gu(48, OWN//2); gu(49, OWN//2); gu(50, 18-OWN)
stamp(3)
a("s_mov_b32 m0, s53\ns_waitcnt vmcnt(0)")
stamp(4)
a("s_barrier")
stamp(5)
for s in range(18):
    a(f"ds_read_b64_tr_b16 v[{64+4*s}:{65+4*s}], v16 offset:{s*2048}")
    a(f"ds_read_b64_tr_b16 v[{66+4*s}:{67+4*s}], v16 offset:{s*2048+256}")
    if s % 2 == 1:
        a("buffer_load_dwordx4 v5, s[36:39], s60 offen lds")
        if s != 17: a(f"s_add_u32 m0, m0, 4096\ns_add_u32 s60, s60, {32*1152}")
stamp(6)
a("s_waitcnt lgkmcnt(0)\ns_barrier")
stamp(7, True)
for s in range(18):
    a(f"ds_read_b128 v[{172+4*s}:{175+4*s}], v18 offset:{s*512}")
    if s >= 6:
        t = s-6
        a("s_waitcnt lgkmcnt(6)")
        c = "0" if t == 0 else "v[20:23]"
        a(f"v_mfma_f32_16x16x32_bf16 v[20:23], v[{64+4*t}:{67+4*t}], v[{172+4*t}:{175+4*t}], {c}")
for t in range(12, 18):
    a(f"s_waitcnt lgkmcnt({17-t})")
    a(f"v_mfma_f32_16x16x32_bf16 v[20:23], v[{64+4*t}:{67+4*t}], v[{172+4*t}:{175+4*t}], v[20:23]")
stamp(8)
a(f"s_mov_b32 s48, {SPIN}\ns_mov_b32 s49, s58")
a.nop(6)
a("""
v_cvt_pk_bf16_f32 v24, v20, v21
v_cvt_pk_bf16_f32 v25, v22, v23
s_nop 1
v_permlane32_swap_b32 v24, v25
v_lshlrev_b32 v26, 16, v24
v_and_b32 v27, 0xffff0000, v24
v_mul_f32 v20, 0xbfb8aa3b, v26
v_mul_f32 v21, 0xbfb8aa3b, v27
v_exp_f32 v20, v20
v_exp_f32 v21, v21
v_lshlrev_b32 v22, 16, v25
v_add_f32 v20, 1.0, v20
v_add_f32 v21, 1.0, v21
v_rcp_f32 v20, v20
v_rcp_f32 v21, v21
v_and_b32 v23, 0xffff0000, v25
v_mul_f32 v26, v26, v20
v_mul_f32 v27, v27, v21
v_cvt_pk_bf16_f32 v26, v26, v27
v_and_b32 v27, 0xffff0000, v26
v_lshlrev_b32 v26, 16, v26
v_mul_f32 v26, v26, v22
v_mul_f32 v27, v27, v23
v_cvt_pk_bf16_f32 v26, v26, v27
s_mov_b32 exec_lo, 0x00ff00ff
s_mov_b32 exec_hi, 0x00ff00ff
buffer_store_dword v26, v28, s[28:31], s56 offen
s_mov_b64 exec, -1
""")
stamp(9)
a("s_waitcnt vmcnt(1)\ns_barrier")
stamp(10)
HR = 172
def hloads():
    for i in range(4):
        a(f"buffer_load_dwordx4 v[{HR+4*i}:{HR+4*i+3}], v30, s[28:31], s49 offen offset:{1024*i} sc1")
    a(f"s_add_u32 s44, s49, 4096\nbuffer_load_dwordx4 v[{HR+16}:{HR+19}], v31, s[28:31], s44 offen sc1")
hloads()
for c in range(9):
    a(f"ds_read_b64_tr_b16 v[{136+4*c}:{137+4*c}], v17 offset:{c*4096}")
    a(f"ds_read_b64_tr_b16 v[{138+4*c}:{139+4*c}], v17 offset:{c*4096+512}")
a("H_CHK:")
for i in range(5):
    a(f"s_waitcnt vmcnt({4-i})")
    if i == 0: a(f"v_max3_u32 v8, v{HR}, v{HR+1}, v{HR+2}\nv_max_u32 v8, v8, v{HR+3}")
    else: a(f"v_max3_u32 v8, v8, v{HR+4*i}, v{HR+4*i+1}\nv_max3_u32 v8, v8, v{HR+4*i+2}, v{HR+4*i+3}")
a(f"""
v_cmp_eq_u32 vcc, -1, v8
s_waitcnt lgkmcnt(0)
s_cbranch_vccnz H_RETRY
H_OK:
""")
stamp(11)
count_stamp(14, "s48")
for kk in range(9):
    d = "v[64:67]" if kk % 2 == 0 else "v[68:71]"
    c = "0" if kk < 2 else d
    h = HR + 4*(kk//2)
    a(f"v_mfma_f32_16x16x32_bf16 {d}, v[{136+4*kk}:{139+4*kk}], v[{h}:{h+3}], {c}")
a.nop(8)
for k in range(4):
    a(f"v_add_f32_dpp v{64+k}, v{68+k}, v{64+k} row_ror:8 row_mask:0xf bank_mask:0xf")
a("""
s_mov_b32 exec_lo, 0x00ff00ff
s_mov_b32 exec_hi, 0x00ff00ff
buffer_store_dwordx4 v[64:67], v29, s[28:31], s52 offen sc1
buffer_store_dword v26, v28, s[28:31], s57 offen sc1
""")
stamp(12)
if B2MODE == "issue": a("s_barrier")
flush_stamps([0,1,2,3,4,5,6,7,8,9,10,11,12,14,13], 0, "C_NOST")
a(f"""s_endpgm
H_RETRY:
s_sub_u32 s48, s48, 1
s_cbranch_scc1 H_OK
s_cmp_lt_u32 s48, {SPIN-HLOC}
s_cbranch_scc0 H_AGAIN
s_mov_b32 exec_lo, 0x00ff00ff
s_mov_b32 exec_hi, 0x00ff00ff
s_cmp_eq_u32 s48, {SPIN-HLOC-1}
s_cbranch_scc0 H_NOG
buffer_store_dword v26, v28, s[28:31], s57 offen sc1
H_NOG:
s_mov_b64 exec, -1
s_bitcmp1_b32 s48, 0
s_cselect_b32 s49, s58, s59
H_AGAIN:
""")
hloads()
a("s_branch H_CHK")

E0 = 96
D0 = 64
Cb0, Cb1, K1, K0, KA, KB, M1, M0, MA, MB = range(40, 50)
a("SEL:")
stamp(16)
if PRIO: a(f"s_setprio {PRIO}")
a(f"""
v_and_b32 v2, 1, v0
v_bfe_u32 v3, v0, 1, 1
v_bfe_i32 v4, v0, 5, 1
v_bfe_i32 v5, v0, 4, 1
v_add_u32 v{Cb0}, -1, v2
v_add_u32 v{Cb1}, -1, v3
v_xor_b32 v{K1}, v{Cb1}, v4
v_xor_b32 v{K0}, v{Cb0}, v4
v_not_b32 v{KA}, v4
v_mov_b32 v{KB}, v4
v_xor_b32 v{M1}, v{Cb1}, v5
v_xor_b32 v{M0}, v{Cb0}, v5
v_not_b32 v{MA}, v5
v_mov_b32 v{MB}, v5
v_lshlrev_b32 v1, 4, v0
v_lshlrev_b32 v2, 7, v0
v_sub_u32 v2, {2047<<5}, v2
v_lshrrev_b32 v12, 3, v0
v_lshlrev_b32 v12, 4, v12
v_mov_b32 v33, {FLG}
""")
kwait()
a("s_barrier")
a.srd(28, 18, WS_USED); a.srd(24, 4, XB); a.srd(40, 14, XB)
a(f"""
s_mov_b32 s46, {KEYS}
s_mov_b32 s47, {KEYS+4096}
s_mov_b32 s48, {SPIN}
s_mov_b32 s61, {DONE}
s_movk_i32 s58, {NH}
s_sub_u32 s22, s2, {NH}
s_lshl_b32 s60, s22, 11
s_add_u32 s60, s60, {PART}
v_bfe_u32 v5, v0, 4, 1
v_lshrrev_b32 v4, 5, v0
v_lshl_add_u32 v5, v5, 1, v4
s_lshl_b32 s44, s22, 2
v_add_u32 v5, s44, v5
v_lshlrev_b32 v5, 1, v5
s_waitcnt lgkmcnt(0)
""")
nplus()
a("""
s_lshr_b32 s44, s20, 5
s_add_u32 s51, s44, s20
s_lshr_b32 s44, s20, 10
s_add_u32 s52, s44, s20
s_lshr_b32 s44, s20, 15
s_add_u32 s53, s44, s20
s_and_b32 s50, s20, 31
s_and_b32 s51, s51, 31
s_and_b32 s52, s52, 31
s_and_b32 s53, s53, 31
""")
for k in range(1, 4):
    a(f"s_sub_u32 s{50+k}, s{50+k}, {32*k}")
for i in range(8):
    for k in range(4):
        if i == 0: a(f"v_add_u32 v{E0+k}, s{50+k}, v2")
        else: a(f"v_add_u32 v{E0+4*i+k}, {hex((-8192) & 0xffffffff)}, v{E0+4*(i-1)+k}")
a("s_barrier")
stamp(17)
if GATE:
    a(f"""
s_mov_b32 s49, {SPIN}
GATEL:
ds_read_b32 v34, v33
s_sub_u32 s49, s49, 1
s_waitcnt lgkmcnt(0)
v_cmp_eq_u32 vcc, s20, v34
s_cbranch_vccnz GATED
s_cbranch_scc0 GATEL
GATED:
""")
stamp(26)
a("POLL:")
for i in range(8):
    a(f"buffer_load_dwordx4 v[{D0+4*i}:{D0+4*i+3}], v1, s[28:31], s{46+i//4} offen offset:{1024*(i%4)} sc1")
a("v_mov_b32 v6, 0\nv_mov_b32 v7, 0\nv_mov_b32 v8, 0")
for i in range(8):
    a(f"s_waitcnt vmcnt({7-i})")
    d = D0+4*i; e = E0+4*i
    a(f"""
v_med3_u32 v9, v6, v{d}, v{d+1}
v_max3_u32 v6, v6, v{d}, v{d+1}
v_bitop3_b32 v8, v{d}, v{e}, v8 bitop3:0xbe
v_max_u32 v7, v7, v9
v_med3_u32 v9, v6, v{d+2}, v{d+3}
v_max3_u32 v6, v6, v{d+2}, v{d+3}
v_bitop3_b32 v8, v{d+1}, v{e+1}, v8 bitop3:0xbe
v_max_u32 v7, v7, v9
v_bitop3_b32 v8, v{d+2}, v{e+2}, v8 bitop3:0xbe
v_bitop3_b32 v8, v{d+3}, v{e+3}, v8 bitop3:0xbe
""")
a("""
v_and_b32 v8, 0xffff, v8
v_cmp_ne_u32 vcc, 0, v8
s_sub_u32 s48, s48, 1
s_cbranch_vccz POLL_OK
s_cbranch_scc0 POLL
POLL_OK:
""")
stamp(18)
count_stamp(27, "s48")
A, B, P, Q = 6, 7, 9, 10
X1, X2, X3 = "quad_perm:[1,0,3,2]", "quad_perm:[2,3,0,1]", "quad_perm:[3,2,1,0]"
DM = "row_mask:0xf bank_mask:0xf"
def cross(perm, c, swap, last=False):
    sa, sb = (B, A) if swap else (A, B)
    a(f"v_mov_b32_dpp v{P}, v{sa} {perm} {DM}\nv_mov_b32_dpp v{Q}, v{sb} {perm} {DM}")
    a(f"v_med3_u32 v{A}, v{A}, v{P}, v{c}\nv_med3_u32 v{B}, v{B}, v{Q}, v{c}")
    if not last: a("s_nop 0")
def inlane(ca=None, cb=None, pad=2):
    global A, P
    if ca is None:
        a(f"v_max_u32 v{P}, v{A}, v{B}\nv_min_u32 v{B}, v{A}, v{B}")
    else:
        a(f"v_med3_u32 v{P}, v{A}, v{B}, v{ca}\nv_med3_u32 v{B}, v{A}, v{B}, v{cb}")
    A, P = P, A
    a.nop(pad)
def swaplevel(op):
    a(f"v_mov_b32 v{P}, v{A}\nv_mov_b32 v{Q}, v{B}\ns_nop 0\n{op} v{A}, v{P}\n{op} v{B}, v{Q}")
    a(f"v_max_u32 v{A}, v{A}, v{P}\nv_max_u32 v{B}, v{B}, v{Q}\ns_nop 0")
cross(X1, Cb0, True, True); inlane()
cross(X3, K1, True); cross(X1, K0, False, True); inlane(KA, KB, 0)
swaplevel("v_permlane32_swap_b32")
cross(X2, M1, False); cross(X1, M0, False, True); inlane(MA, MB, 0)
swaplevel("v_permlane16_swap_b32")
cross(X2, Cb1, False); cross(X1, Cb0, False, True); inlane()
a(f"v_max_u32_dpp v{P}, v{B}, v{A} row_mirror {DM}\nv_max_u32_dpp v{B}, v{A}, v{B} row_mirror {DM}\ns_nop 0")
A, P = P, A
cross(X2, Cb1, False); cross(X1, Cb0, False, True); inlane()
a(f"v_max_u32_dpp v6, v{B}, v{A} row_half_mirror {DM}")
A = 6
stamp(19)
a(f"""
v_bfe_u32 v15, v{A}, 5, 11
v_sub_u32 v15, 2047, v15
s_mov_b32 m0, {XS}
v_mul_u32_u24 v11, 1152, v15
s_mov_b32 s44, 0
v_add_u32 v13, v11, v12
""")
for i in range(9):
    a("buffer_load_dwordx4 v13, s[24:27], s44 offen lds")
    if i != 8: a("s_add_u32 m0, m0, 1024\ns_add_u32 s44, s44, 128")
a(f"""
s_barrier
v_min_u32_dpp v9, v{A}, v{A} {X1} {DM}
s_nop 1
v_min_u32_dpp v9, v9, v9 {X2} {DM}
s_nop 1
v_min_u32_dpp v9, v9, v9 row_half_mirror {DM}
v_mov_b32 v10, 0
""")
for q in range(0, 32, 2):
    a(f"v_cmp_ge_u32 vcc, v{D0+q}, v9\nv_cmp_ge_u32 s[44:45], v{D0+q+1}, v9\ns_nop 0\nv_addc_co_u32 v10, vcc, 0, v10, vcc\nv_addc_co_u32 v10, s[44:45], 0, v10, s[44:45]")
a("""
v_cmp_lt_u32 vcc, 2, v10
s_cbranch_vccnz FALLBACK
SEL_DONE:
ds_write_b32 v33, v9 offset:4
s_waitcnt vmcnt(0) lgkmcnt(0)
""")
stamp(20)
a(f"""
s_barrier
v_add_u32 v5, v5, v11
buffer_load_ushort v4, v5, s[24:27], 0 offen
v_lshrrev_b32 v15, 3, v15
v_cmp_gt_u32 s[56:57], s58, v15
v_lshlrev_b32 v15, 2, v15
v_and_b32 v3, 0xffff0000, v{A}
v_ashrrev_i32 v8, 31, v3
v_not_b32 v8, v8
v_or_b32 v8, 0x80000000, v8
v_xor_b32 v3, v3, v8
v_and_b32 v3, 0xffff0000, v3
v_mul_f32 v3, 0xbfb8aa3b, v3
v_exp_f32 v3, v3
s_mov_b32 s48, {SPIN}
v_add_f32 v3, 1.0, v3
v_rcp_f32 v3, v3
s_nop 0
v_cvt_pk_bf16_f32 v3, v3, v3
v_and_b32 v3, 0xffff0000, v3
s_barrier
s_barrier
""")
stamp(22)
a("""
buffer_load_dword v13, v15, s[28:31], s61 offen sc1
G_POLL:
buffer_load_dwordx4 v[16:19], v1, s[28:31], s60 offen sc1
buffer_load_dwordx4 v[20:23], v1, s[28:31], s60 offen offset:1024 sc1
s_sub_u32 s48, s48, 1
s_waitcnt vmcnt(1)
v_max3_u32 v8, v16, v17, v18
v_max_u32 v8, v8, v19
s_waitcnt vmcnt(0)
v_max3_u32 v8, v8, v20, v21
v_max3_u32 v8, v8, v22, v23
v_add_f32 v16, v16, v20
v_cmp_eq_u32 vcc, -1, v8
v_add_f32 v17, v17, v21
v_add_f32 v18, v18, v22
v_add_f32 v19, v19, v23
s_cbranch_vccz G_OK
s_cbranch_scc0 G_POLL
G_OK:
""")
stamp(23)
count_stamp(28, "s48")
a(f"""
v_cmp_ne_u32 vcc, s20, v13
v_permlane32_swap_b32 v16, v17
v_permlane32_swap_b32 v18, v19
v_add_f32 v16, v16, v17
v_add_f32 v18, v18, v19
s_and_b64 vcc, vcc, s[56:57]
v_lshlrev_b32 v4, 16, v4
s_cbranch_scc1 DONEL
DONE_OK:
v_permlane16_swap_b32 v16, v18
v_add_f32 v16, v16, v18
s_nop 1
v_add_f32_dpp v8, v16, v16 row_ror:8 row_mask:0xf bank_mask:0xf
v_cvt_pk_bf16_f32 v8, v8, v8
v_and_b32 v8, 0xffff0000, v8
v_mul_f32 v8, v8, v3
v_cvt_pk_bf16_f32 v8, v8, v8
v_and_b32 v8, 0xffff0000, v8
v_fma_f32 v8, v4, 0, v8
v_add_f32 v8, v4, v8
v_cvt_pk_bf16_f32 v8, v8, v8
s_mov_b32 exec_lo, 0x00ff00ff
s_mov_b32 exec_hi, 0x00ff00ff
buffer_store_short v8, v5, s[40:43], 0 offen {FINFL}
s_cmp_lg_u32 s2, {NH}
s_cbranch_scc1 F_NOE
s_mov_b64 exec, 1
v_mov_b32 v8, s20
v_mov_b32 v9, s21
v_mov_b32 v10, 0
buffer_store_dwordx2 v[8:9], v10, s[28:31], 0 offen sc1
F_NOE:
""")
stamp(24)
flush_stamps([16,17,18,19,20,22,23,24,26,27,28,25])
a(f"""END:
s_endpgm
DONEL:
s_mov_b32 s48, {SPIN}
DONEL2:
buffer_load_dword v13, v15, s[28:31], s61 offen sc1
s_waitcnt vmcnt(0)
v_cmp_ne_u32 vcc, s20, v13
s_and_b64 vcc, vcc, s[56:57]
s_cbranch_scc0 DONE_OK
s_sub_u32 s48, s48, 1
s_cbranch_scc0 DONEL2
s_branch DONE_OK
FALLBACK:
s_mov_b32 s44, 0
s_mov_b32 s49, 0
v_bfe_u32 v14, v0, 3, 1
v_lshlrev_b32 v14, 2, v14
v_xor_b32 v14, v14, v0
v_and_b32 v14, 7, v14
FB_LOOP:
""")
for q in range(0, 32, 2):
    a(f"v_subrev_u32 v8, s44, v{D0+q}\nv_subrev_u32 v9, s44, v{D0+q+1}")
    a("v_max_u32 v7, v8, v9" if q == 0 else "v_max3_u32 v7, v7, v8, v9")
for dpp in ["row_shr:1 row_mask:0xf", "row_shr:2 row_mask:0xf", "row_shr:4 row_mask:0xf", "row_shr:8 row_mask:0xf", "row_bcast:15 row_mask:0xa", "row_bcast:31 row_mask:0xc"]:
    a(f"s_nop 1\nv_max_u32_dpp v7, v7, v7 {dpp} bank_mask:0xf")
a(f"""
s_nop 1
v_readlane_b32 s45, v7, 63
v_cmp_eq_u32 vcc, s49, v14
s_nop 3
s_add_u32 s44, s44, s45
v_mov_b32 v8, s44
v_cndmask_b32 v{A}, v{A}, v8, vcc
s_add_u32 s49, s49, 1
s_cmp_lt_u32 s49, 8
s_cbranch_scc1 FB_LOOP
v_mov_b32 v9, s44
v_bfe_u32 v15, v{A}, 5, 11
v_sub_u32 v15, 2047, v15
v_mul_u32_u24 v11, 1152, v15
v_add_u32 v13, v11, v12
s_mov_b32 m0, {XS}
s_mov_b32 s44, 0
FB_X:
buffer_load_dwordx4 v13, s[24:27], s44 offen lds
s_add_u32 m0, m0, 1024
s_add_u32 s44, s44, 128
s_cmp_lt_u32 s44, 1152
s_cbranch_scc1 FB_X
s_branch SEL_DONE
""")
a("CODE_END:")
a('.section .rodata,"a"\n.p2align 6')
a.lines.append(kernel_desc(K, 245, 100))
open(sys.argv[1] if len(sys.argv) > 1 else "v4.s", "w").write(a.text())
```

```python
import sys, os
from asmlib import *

XB = 2048*1152
WB = 576*4608*2
WS_USED = 0x400000
KEYS = 0x1000
DONE = 0x8000
REG = 0x100000
STOFF = 0x380000
GU, DN, XS, FLG = 0, 73728, 110592, 119808
LDS = 119936
NH = 112
OOB = 0x7000000
env = lambda k, d: os.environ.get(k, d)
ST = int(env("ST", "0"))
OWN = int(env("OWN", "6"))
FB = int(env("FB", "3"))
PF1 = int(env("PF1", "3"))
GATE = int(env("GATE", "8"))
PRIO = int(env("PRIO", "3"))
CW = int(env("CW", "2"))
XD = int(env("XD", "1"))
LW = int(env("LW", "0"))
PFD = int(env("PFD", "-1"))
HWARM = int(env("HWARM", "1"))
COPYFL = env("COPYFL", "sc1")
FINFL = env("FINFL", "sc1")
HLOC = int(env("HLOC", "10"))
SPIN = 20000
K = "standalone__moe_arch_mod__prompt_kernel"

a = Asm()
a.lines.append(HEADER + f"; @launch grid=(256,1,1) block=(384,1,1) lds={LDS}\n"
  '.amdgcn_target "amdgcn-amd-amdhsa--gfx950"\n.text')
a(".p2align 12\n.fill 0x340, 4, 0xbf800000")
a(f".globl {K}\n.p2align 8\n.type {K},@function\n{K}:")

def stamp(i, wait=False):
    if ST:
        a(f"s_memrealtime s[{64+2*(i%16)}:{65+2*(i%16)}]")
        if wait: a("s_waitcnt lgkmcnt(0)")
def count_stamp(i, reg):
    if ST: a(f"s_sub_u32 s{64+2*(i%16)}, {SPIN}, {reg}\ns_mul_i32 s{64+2*(i%16)}, s{64+2*(i%16)}, 100\ns_add_u32 s{64+2*(i%16)}, s{64+2*(i%16)}, s62")
def flush_stamps(idx, cond=None, lbl=None):
    if not ST: return
    a("s_mov_b64 exec, -1")
    if cond is not None:
        a(f"s_cmp_lg_u32 s3, {cond}\ns_cbranch_scc1 {lbl}")
    a("s_waitcnt vmcnt(0)")
    stamp(idx[-1])
    a("s_waitcnt lgkmcnt(0)")
    m = 0
    for i in idx:
        a(f"v_writelane_b32 v1, s{64+2*(i%16)}, {i}")
        m |= 1 << i
    a(f"v_lshlrev_b32 v2, 2, v0\ns_lshl_b32 s63, s2, 8\ns_add_u32 s63, s63, {STOFF}")
    a(f"s_mov_b32 exec_lo, {hex(m & 0xffffffff)}\ns_mov_b32 exec_hi, {hex(m >> 32)}")
    a(f"buffer_store_dword v1, v2, s[28:31], s63 offen")
    if lbl is not None: a(f"{lbl}:")

def kwait(e=True):
    a("s_waitcnt lgkmcnt(0)")
    if ST: a("s_mov_b32 s62, s96")
    if e: a("s_load_dwordx2 s[20:21], s[18:19], 0")
def nplus():
    a("s_add_u32 s20, s20, 1\ns_addc_u32 s21, s21, 0")
def pubwait(lbl):
    a(f"""
s_mov_b32 s45, {SPIN}
{lbl}:
ds_read_b32 v35, v33
s_sub_u32 s45, s45, 1
s_waitcnt lgkmcnt(0)
v_cmp_eq_u32 vcc, s20, v35
s_cbranch_vccnz {lbl}_OK
s_cbranch_scc0 {lbl}
{lbl}_OK:
""")

if ST: a("s_memrealtime s[96:97]")
stamp(0)
a(f"""
s_cmp_ge_u32 s2, 256
s_cbranch_scc1 END0
s_load_dwordx16 s[4:19], s[0:1], 0
s_getpc_b64 s[22:23]
CPC:
v_lshlrev_b32 v1, 7, v0
v_min_u32 v1, CODE_END-CPC-4, v1
global_load_dword v244, v1, s[22:23]
v_lshrrev_b32 v1, 6, v0
v_and_b32 v0, 63, v0
v_readfirstlane_b32 s3, v1
v_lshrrev_b32 v1, 3, v0
v_and_b32 v2, 7, v0
v_lshlrev_b32 v2, 4, v2
s_cmp_eq_u32 s3, 5
s_cbranch_scc1 ROUTER
s_cmp_lt_u32 s2, {NH}
s_cbranch_scc1 HELPER
s_cmp_eq_u32 s3, 4
s_cbranch_scc1 SEL
s_branch FFN
ROUTER:
s_setprio 2
v_mul_u32_u24 v3, 1152, v1
s_mul_i32 s50, s2, 9216
v_add3_u32 v3, v3, v2, s50
s_lshl_b32 s52, s2, 12
s_add_u32 s52, s52, {REG}
s_cmp_lt_u32 s2, {NH}
s_cselect_b32 s52, {OOB}, s52
v_mov_b32 v4, -1
v_mov_b32 v5, -1
v_mov_b32 v6, -1
v_mov_b32 v7, -1
v_lshlrev_b32 v80, 4, v0
""")
kwait()
stamp(33)
for i in range(9):
    a(f"global_load_dwordx4 v[{8+4*i}:{11+4*i}], v3, s[4:5] offset:{128*i}")
for i in range(9):
    a(f"global_load_dwordx4 v[{44+4*i}:{47+4*i}], v2, s[6:7] offset:{128*i}")
a.srd(28, 18, WS_USED)
a(f"""
buffer_store_dwordx4 v[4:7], v80, s[28:31], s52 offen sc1
buffer_store_dwordx4 v[4:7], v80, s[28:31], s52 offen offset:1024 sc1
buffer_store_dwordx4 v[4:7], v80, s[28:31], s52 offen offset:2048 sc1
""")
stamp(40)
a(f"""
v_lshl_add_u32 v85, s2, 3, v1
v_and_b32 v86, 3, v1            ; k
v_mul_u32_u24 v87, 5, v86
v_cmp_ne_u32 vcc, 0, v86
v_sub_u32 v88, 2047, v85
v_lshlrev_b32 v88, 5, v88
v_lshlrev_b32 v85, 2, v85
v_mov_b32 v90, 0
v_mov_b32 v91, 0
v_mov_b32 v92, 0
v_mov_b32 v93, 0
s_movk_i32 s46, {KEYS}
v_mov_b32 v94, {FLG}
s_waitcnt lgkmcnt(0)
s_add_u32 s20, s20, 1
v_mov_b32 v86, s20
v_lshrrev_b32 v87, v87, v86
v_cndmask_b32 v89, 0, v86, vcc
v_add_u32 v89, v89, v87
v_and_or_b32 v88, v89, 31, v88
""")
stamp(39)
for i in range(9):
    a(f"s_waitcnt vmcnt({8-i+3})")
    for k in range(4):
        a(f"v_dot2c_f32_bf16 v{90+k}, v{8+4*i+k}, v{44+4*i+k}")
stamp(34)
a.nop(3)
a(f"""
v_add_f32 v4, v90, v91
v_add_f32 v6, v92, v93
v_add_f32 v4, v4, v6
s_nop 1
v_add_f32_dpp v4, v4, v4 quad_perm:[1,0,3,2] row_mask:0xf bank_mask:0xf
s_nop 1
v_add_f32_dpp v4, v4, v4 quad_perm:[2,3,0,1] row_mask:0xf bank_mask:0xf
s_nop 1
v_add_f32_dpp v4, v4, v4 row_half_mirror row_mask:0xf bank_mask:0xf
v_cvt_pk_bf16_f32 v5, v4, v4
v_cmp_o_f32 vcc, v4, v4
v_ashrrev_i32 v6, 31, v5
v_or_b32 v6, 0x80000000, v6
v_xor_b32 v6, v6, v5
v_cndmask_b32 v6, 0, v6, vcc
v_and_b32 v6, 0xffff0000, v6
v_or_b32 v6, v6, v88
s_mov_b32 exec_lo, 0x01010101
s_mov_b32 exec_hi, 0x01010101
s_waitcnt vmcnt(0)
buffer_store_dword v6, v85, s[28:31], s46 offen sc1
ds_write_b32 v94, v86
s_mov_b64 exec, -1
""")
stamp(35)
if ST:
    a(f"s_cmp_lt_u32 s2, {NH}\ns_cbranch_scc1 R_HELP")
    flush_stamps([33,34,35,39,40,38])
    a("s_endpgm\nR_HELP:")
else:
    a(f"s_cmp_ge_u32 s2, {NH}\ns_cbranch_scc1 END0")
a(f"""
s_waitcnt lgkmcnt(0)
s_barrier
s_setprio 0
s_lshl_b32 s47, s2, 7
v_mov_b32 v82, 0x207
v_cmp_class_f32 vcc, v4, v82
s_cbranch_vccnz R_SLOW
R_COPY:
s_barrier
""")
stamp(36)
for i in range(9):
    a(f"global_store_dwordx4 v3, v[{8+4*i}:{11+4*i}], s[14:15] offset:{128*i} {COPYFL}")
a(f"""
s_add_u32 s47, s47, {DONE}
v_mov_b32 v5, 0
s_mov_b64 exec, 1
s_waitcnt vmcnt(0)
buffer_store_dword v86, v5, s[28:31], s47 offen sc1
""")
stamp(37)
flush_stamps([33,34,35,36,37,39,40,38], 5, "R_NOST")
a("END0:\ns_endpgm")

a(f"""
HELPER:
s_cmp_eq_u32 s3, 4
s_cbranch_scc1 PREF
s_add_u32 s47, s3, 1
s_mul_i32 s47, s47, {NH}
s_add_u32 s47, s47, s2
s_cmp_ge_u32 s47, 256
s_cbranch_scc1 END0
v_mul_u32_u24 v3, 1152, v1
s_mul_i32 s50, s47, 9216
v_add3_u32 v3, v3, v2, s50
s_lshl_b32 s47, s47, 7
""")
kwait(False)
a.srd(28, 18, WS_USED)
a(f"v_mov_b32 v86, {FLG}\ns_barrier\nds_read_b32 v86, v86")
for i in range(9):
    a(f"global_load_dwordx4 v[{8+4*i}:{11+4*i}], v3, s[4:5] offset:{128*i}")
a("s_waitcnt vmcnt(0) lgkmcnt(0)\ns_branch R_SLOW")

R0 = 32*OWN
NGU = (576-R0)*9
nb_gu = -(-NGU // (14*64))
NDN = 18*288
nb_dn = -(-NDN // (14*64))
a(f"""
PREF:
s_lshr_b32 s44, s2, 3
s_lshl_b32 s44, s44, 6
s_and_b32 s45, s2, 7
s_mul_i32 s46, s45, {18*36864}
s_mul_i32 s45, s45, 1152
s_add_u32 s45, s45, {R0*9216}
v_add_u32 v2, s44, v0
""")
def gu_addr(blk):
    a(f"""
v_add_u32 v4, {blk*14*64}, v2
v_mul_u32_u24 v5, 7282, v4
v_lshrrev_b32 v5, 16, v5
v_mul_u32_u24 v6, {9216-9*128}, v5
v_lshl_add_u32 v4, v4, 7, v6
v_add_u32 v{8+blk}, s45, v4
""")
n1 = (PF1+1)//2
for blk in range(n1): gu_addr(blk)
kwait(XD)
a.srd(32, 8, WB); a.srd(36, 10, WB)
pfl = []
for blk in range(nb_gu):
    pfl += [f"buffer_load_dword v24, v{8+blk}, s[32:35], 0 offen", f"buffer_load_dword v24, v{8+blk}, s[36:39], 0 offen"]
if XD: a("s_waitcnt lgkmcnt(0)")
for t in pfl[:PF1]: a(t)
a.srd(40, 12, WB)
if ST: a.srd(28, 18, WS_USED)
for blk in range(n1, nb_gu): gu_addr(blk)
for blk in range(nb_dn):
    a(f"v_add_u32 v4, {blk*14*64}, v2\nv_lshlrev_b32 v{16+blk}, 7, v4")
if NDN % (14*64):
    a(f"v_cmp_gt_u32 vcc, {NDN}, v4\nv_mov_b32 v5, {OOB}\ns_nop 0\nv_cndmask_b32 v{16+nb_dn-1}, v5, v{16+nb_dn-1}, vcc")
a("s_barrier")
stamp(8)
for t in pfl[PF1:]: a(t)
if PFD >= 0: a(f"s_waitcnt vmcnt({PFD})")
for blk in range(nb_dn):
    a(f"buffer_load_dword v24, v{16+blk}, s[40:43], s46 offen")
if ST: a(f"s_waitcnt vmcnt({nb_dn})")
stamp(9)
a(f"s_waitcnt vmcnt({CW})\ns_barrier")
stamp(10)
flush_stamps([0,8,9,10,11])
a("s_endpgm")

a(f"""
FFN:
s_sub_u32 s44, s2, {NH}
s_and_b32 s23, s44, 7            ; xs
s_lshr_b32 s61, s44, 3           ; q
s_mul_i32 s22, s23, 18
s_add_u32 s22, s22, s61          ; colblock
v_lshrrev_b32 v2, 2, v0
v_mul_u32_u24 v2, 9216, v2
s_lshl_b32 s44, s22, 6
v_and_b32 v3, 3, v0
v_lshrrev_b32 v4, 5, v0
v_xor_b32 v3, v3, v4
s_and_b32 s45, s3, 1             ; m
s_lshl_b32 s46, s45, 1
v_xor_b32 v3, s46, v3
v_lshlrev_b32 v3, 4, v3
v_add3_u32 v3, v3, v2, s44
s_lshr_b32 s46, s3, 1
s_and_b32 s47, s22, 1
s_mul_i32 s47, s47, {OWN}
s_add_u32 s48, s46, s47          ; n own
s_sub_u32 s49, {OWN}, s47
s_add_u32 s49, s49, s46          ; n partner
s_add_u32 s50, s46, {2*OWN}      ; n helper
s_mul_i32 s51, s45, 36864
s_cmp_eq_u32 s45, 0
""")
kwait()
stamp(1)
a("s_cselect_b32 s32, s8, s10\ns_cselect_b32 s33, s9, s11")
a(f"s_and_b32 s33, s33, 0xffff\ns_mov_b32 s34, {WB}\ns_mov_b32 s35, 0x20000")
addr = f"""
s_cmp_ge_u32 s61, 9
s_cselect_b32 s45, 9, 0          ; 9*half
s_sub_u32 s61, s61, s45          ; beta
v_lshrrev_b32 v5, 3, v0
v_mul_u32_u24 v6, 1152, v5
v_bfe_u32 v5, v5, 1, 1
s_and_b32 s44, s3, 1
s_lshl_b32 s44, s44, 1
v_or_b32 v5, s44, v5             ; sigma
v_lshlrev_b32 v5, 1, v5
v_and_b32 v7, 7, v0
v_xor_b32 v5, v5, v7
v_lshl_add_u32 v5, v5, 4, v6
s_sub_u32 s60, s22, s61
s_mul_i32 s60, s60, 32*1152
s_lshl_b32 s44, s61, 7
s_add_u32 s60, s60, s44
s_mul_i32 s44, s3, 8*1152
s_add_u32 s60, s60, s44
s_lshl_b32 s53, s3, 10
s_add_u32 s53, s53, {DN}
v_mov_b32 v33, {FLG}
v_lshrrev_b32 v12, 4, v0        ; g
v_bfe_u32 v13, v0, 2, 2         ; r
v_bfe_u32 v14, v0, 1, 1         ; m
v_and_b32 v15, 1, v0            ; ch
v_lshlrev_b32 v16, 3, v12
v_add_u32 v16, v16, v13         ; 8g+r
v_lshlrev_b32 v17, 7, v16
v_lshlrev_b32 v16, 6, v16
v_mul_u32_u24 v18, 36864, v14
v_add_u32 v16, v16, v18
v_and_b32 v18, 1, v12
v_lshl_add_u32 v19, v14, 1, v18 ; 2m + (g&1)
v_xor_b32 v19, s3, v19
v_lshl_add_u32 v16, v19, 4, v16
v_lshl_add_u32 v16, v15, 3, v16
v_lshrrev_b32 v19, 1, v13
v_lshl_add_u32 v19, v18, 1, v19 ; sigma = (r>>1) | (g&1)<<1
v_xor_b32 v19, s3, v19
v_lshl_add_u32 v17, v19, 5, v17
v_and_b32 v19, 3, v0
v_lshl_add_u32 v17, v19, 3, v17
v_add_u32 v17, {DN}, v17
v_lshlrev_b32 v18, 2, v18
v_xor_b32 v18, v18, v7          ; t ^ ((g&1)<<2)
v_lshlrev_b32 v18, 4, v18
v_lshl_add_u32 v18, v12, 7, v18
v_add_u32 v18, {XS}, v18
v_lshlrev_b32 v19, 4, v7        ; t*16
v_and_b32 v28, 1, v12
v_lshrrev_b32 v29, 5, v0
v_lshl_add_u32 v28, v28, 1, v29
v_lshl_add_u32 v28, v28, 2, v19
s_lshl_b32 s52, s2, 12
s_add_u32 s52, s52, {REG}
s_lshl_b32 s44, s3, 7
s_add_u32 s56, s52, s44
s_lshl_b32 s44, s61, 15
s_sub_u32 s58, s52, s44
s_lshl_b32 s44, s3, 9
s_add_u32 s52, s52, s44
v_lshl_add_u32 v31, v12, 7, v19 ; g*128 + t*16
v_bfe_u32 v30, v0, 3, 1
v_lshl_add_u32 v30, v30, 15, v31 ; + u*32768
"""
nissued = [0]
def gu(nreg, cnt, win=0):
    if cnt == 0: return
    a(f"s_mul_i32 s54, s{nreg}, 147456\ns_lshl_b32 s55, s{nreg}, 10\ns_add_u32 m0, s55, s51")
    a("s_waitcnt lgkmcnt(0)" if (XD and nissued[0] == 0) else "s_nop 0")
    for y in range(cnt):
        if win: a(f"s_waitcnt vmcnt({win-1})")
        a("buffer_load_dwordx4 v3, s[32:35], s54 offen lds")
        nissued[0] += 1
        if nissued[0] == FB:
            a.srd(36, 12, WB); a.srd(28, 18, WS_USED)
            a(addr); a("s_waitcnt lgkmcnt(0)\ns_add_u32 s20, s20, 1\nv_mov_b32 v34, s20")
            pubwait("L_PUB")
            stamp(2)
        if GATE and nissued[0] == GATE:
            a("ds_write_b32 v33, v34 offset:8")
        if y != cnt-1:
            a("s_add_u32 m0, m0, 2048\ns_add_u32 s54, s54, 2*147456")
gu(48, OWN//2); gu(49, OWN//2); gu(50, 18-OWN, LW)
stamp(3)
a("s_mov_b32 m0, s53\ns_branch TAIL")

a(".p2align 12\nTAIL:\ns_waitcnt vmcnt(0)")
stamp(4)
a("s_barrier")
stamp(5)
for s in range(18):
    a(f"ds_read_b64_tr_b16 v[{64+4*s}:{65+4*s}], v16 offset:{s*2048}")
    a(f"ds_read_b64_tr_b16 v[{66+4*s}:{67+4*s}], v16 offset:{s*2048+256}")
    if s % 2 == 1:
        a("buffer_load_dwordx4 v5, s[36:39], s60 offen lds")
        if s != 17: a(f"s_add_u32 m0, m0, 4096\ns_add_u32 s60, s60, {32*1152}")
stamp(6)
a(f"s_mov_b32 s48, {SPIN}\ns_mov_b32 s49, s58\ns_waitcnt lgkmcnt(0)\ns_barrier")
stamp(7, True)
for s in range(18):
    a(f"ds_read_b128 v[{172+4*s}:{175+4*s}], v18 offset:{s*512}")
    if s >= 6:
        t = s-6
        a("s_waitcnt lgkmcnt(6)")
        c = "0" if t == 0 else "v[20:23]"
        a(f"v_mfma_f32_16x16x32_bf16 v[20:23], v[{64+4*t}:{67+4*t}], v[{172+4*t}:{175+4*t}], {c}")
for t in range(12, 18):
    a(f"s_waitcnt lgkmcnt({17-t})")
    a(f"v_mfma_f32_16x16x32_bf16 v[20:23], v[{64+4*t}:{67+4*t}], v[{172+4*t}:{175+4*t}], v[20:23]")
stamp(8)
a.nop(8)
a("""
v_cvt_pk_bf16_f32 v24, v20, v21
v_cvt_pk_bf16_f32 v25, v22, v23
s_nop 1
v_permlane32_swap_b32 v24, v25
v_lshlrev_b32 v26, 16, v24
v_and_b32 v27, 0xffff0000, v24
v_mul_f32 v20, 0xbfb8aa3b, v26
v_mul_f32 v21, 0xbfb8aa3b, v27
v_exp_f32 v20, v20
v_exp_f32 v21, v21
v_lshlrev_b32 v22, 16, v25
v_add_f32 v20, 1.0, v20
v_add_f32 v21, 1.0, v21
v_rcp_f32 v20, v20
v_rcp_f32 v21, v21
v_and_b32 v23, 0xffff0000, v25
v_mul_f32 v26, v26, v20
v_mul_f32 v27, v27, v21
v_cvt_pk_bf16_f32 v26, v26, v27
v_and_b32 v27, 0xffff0000, v26
v_lshlrev_b32 v26, 16, v26
v_mul_f32 v26, v26, v22
v_mul_f32 v27, v27, v23
v_cvt_pk_bf16_f32 v26, v26, v27
s_mov_b32 exec_lo, 0x00ff00ff
s_mov_b32 exec_hi, 0x00ff00ff
buffer_store_dword v26, v28, s[28:31], s56 offen
s_mov_b64 exec, -1
""")
stamp(9)
a("s_waitcnt vmcnt(1)\ns_barrier")
stamp(10)
HR = 172
def hloads():
    a(f"buffer_load_dwordx4 v[{HR}:{HR+3}], v30, s[28:31], s49 offen sc1")
    for i in range(1, 5):
        a(f"s_add_u32 s44, s49, {65536*i}\nbuffer_load_dwordx4 v[{HR+4*i}:{HR+4*i+3}], v{30 if i < 4 else 31}, s[28:31], s44 offen sc1")
hloads()
for c in range(9):
    a(f"ds_read_b64_tr_b16 v[{136+4*c}:{137+4*c}], v17 offset:{c*4096}")
    a(f"ds_read_b64_tr_b16 v[{138+4*c}:{139+4*c}], v17 offset:{c*4096+512}")
a("H_CHK:")
for i in range(5):
    a(f"s_waitcnt vmcnt({4-i})")
    if i == 0: a(f"v_max3_u32 v8, v{HR}, v{HR+1}, v{HR+2}\nv_max_u32 v8, v8, v{HR+3}")
    else: a(f"v_max3_u32 v8, v8, v{HR+4*i}, v{HR+4*i+1}\nv_max3_u32 v8, v8, v{HR+4*i+2}, v{HR+4*i+3}")
a(f"""
v_cmp_eq_u32 vcc, -1, v8
s_waitcnt lgkmcnt(0)
s_cbranch_vccnz H_RETRY
H_OK:
""")
stamp(11)
count_stamp(14, "s48")
for kk in range(9):
    d = "v[64:67]" if kk % 2 == 0 else "v[68:71]"
    c = "0" if kk < 2 else d
    h = HR + 4*(kk//2)
    a(f"v_mfma_f32_16x16x32_bf16 {d}, v[{136+4*kk}:{139+4*kk}], v[{h}:{h+3}], {c}")
a.nop(8)
for k in range(4):
    a(f"v_add_f32_dpp v{64+k}, v{68+k}, v{64+k} row_ror:8 row_mask:0xf bank_mask:0xf")
a("""
s_mov_b32 exec_lo, 0x00ff00ff
s_mov_b32 exec_hi, 0x00ff00ff
buffer_store_dwordx4 v[64:67], v31, s[28:31], s52 offen offset:1024 sc1
buffer_store_dword v26, v28, s[28:31], s56 offen offset:512 sc1
""")
stamp(12)
a("s_barrier")
flush_stamps([0,1,2,3,4,5,6,7,8,9,10,11,12,14,13], 0, "C_NOST")
a(f"""s_endpgm
H_RETRY:
s_sub_u32 s48, s48, 1
s_cbranch_scc1 H_OK
s_cmp_lt_u32 s48, {SPIN-HLOC}
s_cbranch_scc0 H_AGAIN
s_cmp_eq_u32 s48, {SPIN-HLOC-1}
s_cbranch_scc0 H_NOG
s_mov_b32 exec_lo, 0x00ff00ff
s_mov_b32 exec_hi, 0x00ff00ff
buffer_store_dword v26, v28, s[28:31], s56 offen offset:512 sc1
s_mov_b64 exec, -1
H_NOG:
s_xor_b32 s49, s49, 512
H_AGAIN:
""")
hloads()
a("s_branch H_CHK")
a("""
R_SLOW:
s_mov_b32 s44, 0x7f807f80
s_mov_b32 s45, 0x00400040
""")
for i in range(36):
    r = 8+i
    a(f"v_and_b32 v80, s44, v{r}\nv_add_u32 v80, 0x00800080, v80\nv_lshrrev_b32 v80, 9, v80\nv_and_or_b32 v{r}, v80, s45, v{r}")
a("s_branch R_COPY")

E0 = 96
D0 = 64
Cb0, Cb1, K1, K0, KA, KB, M1, M0, MA, MB = range(40, 50)
a(".p2align 12\nSEL:")
stamp(16)
if PRIO: a(f"s_setprio {PRIO}")
kwait()
a(f"""
v_lshlrev_b32 v12, 4, v1         ; chunk*16
v_lshrrev_b32 v14, 1, v1
v_lshlrev_b32 v14, 12, v14
v_and_b32 v3, 1, v1
v_mul_u32_u24 v3, {72*4096}, v3
v_add3_u32 v14, v14, v3, v2
v_and_b32 v2, 1, v0
v_bfe_u32 v3, v0, 1, 1
v_bfe_i32 v4, v0, 5, 1
v_bfe_i32 v5, v0, 4, 1
v_add_u32 v{Cb0}, -1, v2
v_add_u32 v{Cb1}, -1, v3
v_xor_b32 v{K1}, v{Cb1}, v4
v_xor_b32 v{K0}, v{Cb0}, v4
v_not_b32 v{KA}, v4
v_mov_b32 v{KB}, v4
v_xor_b32 v{M1}, v{Cb1}, v5
v_xor_b32 v{M0}, v{Cb0}, v5
v_not_b32 v{MA}, v5
v_mov_b32 v{MB}, v5
v_lshlrev_b32 v1, 4, v0
v_lshlrev_b32 v2, 7, v0
v_sub_u32 v2, {2047<<5}, v2
v_mov_b32 v33, {FLG+8}
""")
a.srd(28, 18, WS_USED); a.srd(24, 4, XB); a.srd(40, 14, XB)
a(f"""
s_movk_i32 s46, {KEYS}
s_movk_i32 s47, {KEYS+4096}
s_mov_b32 s48, {SPIN}
s_mov_b32 s61, {DONE}
s_sub_u32 s22, s2, {NH}
s_lshr_b32 s44, s22, 4           ; beta_j
s_lshl_b32 s60, s44, 15
s_and_b32 s44, s22, 15
s_lshl_b32 s44, s44, 7
s_add_u32 s60, s60, s44
s_add_u32 s60, s60, {REG + NH*4096 + 1024}
s_add_u32 s59, s60, 16384
v_bfe_u32 v5, v0, 4, 1
v_lshrrev_b32 v4, 5, v0
v_lshl_add_u32 v5, v5, 1, v4
s_lshl_b32 s44, s22, 2
v_add_u32 v5, s44, v5
v_lshlrev_b32 v5, 1, v5
s_lshr_b32 s44, s22, 3
s_cmp_ge_u32 s44, 9
s_cselect_b32 s45, 72, 0
s_and_b32 s44, s22, 7
s_add_u32 s44, s44, s45
s_lshl_b32 s58, s44, 12
s_add_u32 s58, s58, {REG + NH*4096}
v_lshrrev_b32 v36, 2, v0
v_min_u32 v36, 8, v36
v_lshlrev_b32 v36, 15, v36
v_and_b32 v37, 3, v0
v_lshl_add_u32 v36, v37, 7, v36
s_waitcnt lgkmcnt(0)
""")
nplus()
a("""
s_lshr_b32 s44, s20, 5
s_add_u32 s51, s44, s20
s_lshr_b32 s44, s20, 10
s_add_u32 s52, s44, s20
s_lshr_b32 s44, s20, 15
s_add_u32 s53, s44, s20
s_and_b32 s50, s20, 31
s_and_b32 s51, s51, 31
s_and_b32 s52, s52, 31
s_and_b32 s53, s53, 31
""")
for k in range(1, 4):
    a(f"s_sub_u32 s{50+k}, s{50+k}, {32*k}")
a(f"s_movk_i32 s44, {hex(0xe000)}")
for i in range(8):
    for k in range(4):
        if i == 0: a(f"v_add_u32 v{E0+k}, s{50+k}, v2")
        else: a(f"v_add_u32 v{E0+4*i+k}, s44, v{E0+4*(i-1)+k}")
stamp(17)
if GATE: pubwait("GATEL")
stamp(26)
a("POLL:")
for i in range(8):
    a(f"buffer_load_dwordx4 v[{D0+4*i}:{D0+4*i+3}], v1, s[28:31], s{46+i//4} offen offset:{1024*(i%4)} sc1")
a("v_mov_b32 v6, 0\nv_mov_b32 v7, 0\nv_mov_b32 v8, 0")
for i in range(8):
    a(f"s_waitcnt vmcnt({7-i})")
    d = D0+4*i; e = E0+4*i
    a(f"""
v_med3_u32 v9, v6, v{d}, v{d+1}
v_max3_u32 v6, v6, v{d}, v{d+1}
v_bitop3_b32 v8, v{d}, v{e}, v8 bitop3:0xbe
v_max_u32 v7, v7, v9
v_med3_u32 v9, v6, v{d+2}, v{d+3}
v_max3_u32 v6, v6, v{d+2}, v{d+3}
v_bitop3_b32 v8, v{d+1}, v{e+1}, v8 bitop3:0xbe
v_max_u32 v7, v7, v9
v_bitop3_b32 v8, v{d+2}, v{e+2}, v8 bitop3:0xbe
v_bitop3_b32 v8, v{d+3}, v{e+3}, v8 bitop3:0xbe
""")
a("""
v_and_b32 v8, 0xffff, v8
v_cmp_ne_u32 vcc, 0, v8
s_sub_u32 s48, s48, 1
s_cbranch_vccz POLL_OK
s_cbranch_scc0 POLL
POLL_OK:
""")
if HWARM: a("buffer_load_dword v37, v36, s[28:31], s58 offen sc1")
stamp(18)
count_stamp(27, "s48")
A, B, P, Q = 6, 7, 9, 10
X1, X2, X3 = "quad_perm:[1,0,3,2]", "quad_perm:[2,3,0,1]", "quad_perm:[3,2,1,0]"
DM = "row_mask:0xf bank_mask:0xf"
def cross(perm, c, swap, last=False):
    sa, sb = (B, A) if swap else (A, B)
    a(f"v_mov_b32_dpp v{P}, v{sa} {perm} {DM}\nv_mov_b32_dpp v{Q}, v{sb} {perm} {DM}")
    a(f"v_med3_u32 v{A}, v{A}, v{P}, v{c}\nv_med3_u32 v{B}, v{B}, v{Q}, v{c}")
    if not last: a("s_nop 0")
def inlane(ca=None, cb=None, pad=2):
    global A, P
    if ca is None:
        a(f"v_max_u32 v{P}, v{A}, v{B}\nv_min_u32 v{B}, v{A}, v{B}")
    else:
        a(f"v_med3_u32 v{P}, v{A}, v{B}, v{ca}\nv_med3_u32 v{B}, v{A}, v{B}, v{cb}")
    A, P = P, A
    a.nop(pad)
def swaplevel(op):
    a(f"v_mov_b32 v{P}, v{A}\nv_mov_b32 v{Q}, v{B}\ns_nop 0\n{op} v{A}, v{P}\n{op} v{B}, v{Q}")
    a(f"v_max_u32 v{A}, v{A}, v{P}\nv_max_u32 v{B}, v{B}, v{Q}\ns_nop 0")
cross(X1, Cb0, True, True); inlane()
cross(X3, K1, True); cross(X1, K0, False, True); inlane(KA, KB, 0)
swaplevel("v_permlane32_swap_b32")
cross(X2, M1, False); cross(X1, M0, False, True); inlane(MA, MB, 0)
swaplevel("v_permlane16_swap_b32")
cross(X2, Cb1, False); cross(X1, Cb0, False, True); inlane()
a(f"v_max_u32_dpp v{P}, v{B}, v{A} row_mirror {DM}\nv_max_u32_dpp v{B}, v{A}, v{B} row_mirror {DM}\ns_nop 0")
A, P = P, A
cross(X2, Cb1, False); cross(X1, Cb0, False, True); inlane()
a(f"v_max_u32_dpp v6, v{B}, v{A} row_half_mirror {DM}")
A = 6
stamp(19)
a(f"""
v_bfe_u32 v15, v{A}, 5, 11
v_sub_u32 v15, 2047, v15
s_mov_b32 m0, {XS}
v_mul_u32_u24 v11, 1152, v15
s_mov_b32 s44, 0
v_add_u32 v13, v11, v12
""")
for i in range(9):
    a("buffer_load_dwordx4 v13, s[24:27], s44 offen lds")
    if i != 8: a("s_add_u32 m0, m0, 1024\ns_add_u32 s44, s44, 128")
a(f"""
s_barrier
v_min_u32_dpp v9, v{A}, v{A} {X1} {DM}
s_nop 1
v_min_u32_dpp v9, v9, v9 {X2} {DM}
s_nop 1
v_min_u32_dpp v9, v9, v9 row_half_mirror {DM}
v_mov_b32 v10, 0
""")
for q in range(0, 32, 2):
    a(f"v_cmp_ge_u32 vcc, v{D0+q}, v9\nv_cmp_ge_u32 s[44:45], v{D0+q+1}, v9\ns_nop 0\nv_addc_co_u32 v10, vcc, 0, v10, vcc\nv_addc_co_u32 v10, s[44:45], 0, v10, s[44:45]")
a("""
v_cmp_lt_u32 vcc, 2, v10
s_cbranch_vccnz FALLBACK
SEL_DONE:
s_waitcnt vmcnt(0)
""")
stamp(20)
a(f"""
s_barrier
v_add_u32 v5, v5, v11
buffer_load_ushort v4, v5, s[24:27], 0 offen
v_lshrrev_b32 v15, 3, v15
v_lshlrev_b32 v15, 7, v15
v_and_b32 v3, 0xffff0000, v{A}
v_ashrrev_i32 v8, 31, v3
v_not_b32 v8, v8
v_or_b32 v8, 0x80000000, v8
v_xor_b32 v3, v3, v8
v_and_b32 v3, 0xffff0000, v3
v_mul_f32 v3, 0xbfb8aa3b, v3
v_exp_f32 v3, v3
s_mov_b32 s48, {SPIN}
v_add_f32 v3, 1.0, v3
v_rcp_f32 v3, v3
s_nop 0
v_cvt_pk_bf16_f32 v3, v3, v3
v_and_b32 v3, 0xffff0000, v3
s_barrier
s_barrier
""")
stamp(22)
a("""
buffer_load_dword v13, v15, s[28:31], s61 offen sc1
G_POLL:
buffer_load_dwordx4 v[16:19], v14, s[28:31], s60 offen sc1
buffer_load_dwordx4 v[20:23], v14, s[28:31], s59 offen sc1
s_sub_u32 s48, s48, 1
s_waitcnt vmcnt(1)
v_max3_u32 v8, v16, v17, v18
v_max_u32 v8, v8, v19
s_waitcnt vmcnt(0)
v_max3_u32 v8, v8, v20, v21
v_max3_u32 v8, v8, v22, v23
v_add_f32 v16, v16, v20
v_cmp_eq_u32 vcc, -1, v8
v_add_f32 v17, v17, v21
v_add_f32 v18, v18, v22
v_add_f32 v19, v19, v23
s_cbranch_vccz G_OK
s_cbranch_scc0 G_POLL
G_OK:
""")
stamp(23)
count_stamp(28, "s48")
a(f"""
v_cmp_ne_u32 vcc, s20, v13
v_permlane32_swap_b32 v16, v17
v_permlane32_swap_b32 v18, v19
v_add_f32 v16, v16, v17
v_add_f32 v18, v18, v19
v_lshlrev_b32 v4, 16, v4
s_cbranch_vccnz DONEL
DONE_OK:
v_permlane16_swap_b32 v16, v18
v_add_f32 v16, v16, v18
s_nop 1
v_add_f32_dpp v8, v16, v16 row_ror:8 row_mask:0xf bank_mask:0xf
v_cvt_pk_bf16_f32 v8, v8, v8
v_and_b32 v8, 0xffff0000, v8
v_mul_f32 v8, v8, v3
v_cvt_pk_bf16_f32 v8, v8, v8
v_and_b32 v8, 0xffff0000, v8
v_fma_f32 v8, v4, 0, v8
v_add_f32 v8, v4, v8
v_cvt_pk_bf16_f32 v8, v8, v8
s_mov_b32 exec_lo, 0x00ff00ff
s_mov_b32 exec_hi, 0x00ff00ff
buffer_store_short v8, v5, s[40:43], 0 offen {FINFL}
s_cmp_lg_u32 s2, {NH}
s_cbranch_scc1 F_NOE
s_mov_b64 exec, 1
v_mov_b32 v8, s20
v_mov_b32 v9, s21
v_mov_b32 v10, 0
buffer_store_dwordx2 v[8:9], v10, s[28:31], 0 offen sc1
F_NOE:
""")
stamp(24)
flush_stamps([16,17,18,19,20,22,23,24,26,27,28,25])
a(f"""s_endpgm
DONEL:
s_mov_b32 s48, {SPIN}
DONEL2:
buffer_load_dword v13, v15, s[28:31], s61 offen sc1
s_sub_u32 s48, s48, 1
s_waitcnt vmcnt(0)
v_cmp_ne_u32 vcc, s20, v13
s_cbranch_vccz DONE_OK
s_cbranch_scc0 DONEL2
s_branch DONE_OK
FALLBACK:
s_mov_b32 s44, 0
s_mov_b32 s49, 0
v_bfe_u32 v38, v0, 3, 1
v_lshlrev_b32 v38, 2, v38
v_xor_b32 v38, v38, v0
v_and_b32 v38, 7, v38
FB_LOOP:
""")
for q in range(0, 32, 2):
    a(f"v_subrev_u32 v8, s44, v{D0+q}\nv_subrev_u32 v9, s44, v{D0+q+1}")
    a("v_max_u32 v7, v8, v9" if q == 0 else "v_max3_u32 v7, v7, v8, v9")
for dpp in ["row_shr:1 row_mask:0xf", "row_shr:2 row_mask:0xf", "row_shr:4 row_mask:0xf", "row_shr:8 row_mask:0xf", "row_bcast:15 row_mask:0xa", "row_bcast:31 row_mask:0xc"]:
    a(f"s_nop 1\nv_max_u32_dpp v7, v7, v7 {dpp} bank_mask:0xf")
a(f"""
s_nop 1
v_readlane_b32 s45, v7, 63
v_cmp_eq_u32 vcc, s49, v38
s_nop 3
s_add_u32 s44, s44, s45
v_mov_b32 v8, s44
v_cndmask_b32 v{A}, v{A}, v8, vcc
s_add_u32 s49, s49, 1
s_cmp_lt_u32 s49, 8
s_cbranch_scc1 FB_LOOP
v_bfe_u32 v15, v{A}, 5, 11
v_sub_u32 v15, 2047, v15
v_mul_u32_u24 v11, 1152, v15
v_add_u32 v13, v11, v12
s_mov_b32 m0, {XS}
s_mov_b32 s44, 0
FB_X:
buffer_load_dwordx4 v13, s[24:27], s44 offen lds
s_add_u32 m0, m0, 1024
s_add_u32 s44, s44, 128
s_cmp_lt_u32 s44, 1152
s_cbranch_scc1 FB_X
s_branch SEL_DONE
CODE_END:
""")
a('.section .rodata,"a"\n.p2align 6')
a.lines.append(kernel_desc(K, 245, 100))
open(sys.argv[1] if len(sys.argv) > 1 else "v5.s", "w").write(a.text())
```
